```python
import torch

def _softmax(x, axis=-1):
    return torch.softmax(x, dim=axis)
def _gelu(x):
    return torch.nn.functional.gelu(x, approximate="tanh")
def _silu(x):
    return torch.nn.functional.silu(x)
def _sigmoid(x):
    return torch.sigmoid(x)
def _layernorm(x, axis=-1, eps=1e-5):
    m = x.mean(dim=axis, keepdim=True)
    v = x.var(dim=axis, keepdim=True, unbiased=False)
    return (x - m) / torch.sqrt(v + eps)
def _scatter_add(tgt, idx, src, axis=0):
    return tgt.clone().index_add_(axis, idx, src)
def _segment_sum(src, seg, n):
    out = torch.zeros((n,) + src.shape[1:], dtype=src.dtype)
    return out.index_add_(0, seg, src)
def _pad(x, pw):
    flat = tuple(v for pair in reversed(pw) for v in pair)
    return torch.nn.functional.pad(x, flat)

kernel_name = 'standalone__gqa_softmax__near_ridge'

def setup_inputs():

    _w = (lambda a: (lambda t: t.to(torch.bfloat16) if t.is_floating_point() else t)(torch.as_tensor(a)))
    B, Hq, Hkv, Sq, Sk, D = 16, 32, 32, 288, 1024, 128
    return {
        "q": _w((lambda *s: torch.randn(*s, dtype=torch.bfloat16) * 0.8)(B, Hq, Sq, D)),
        "k": _w((lambda *s: torch.randn(*s, dtype=torch.bfloat16) * 0.8)(B, Hkv, Sk, D)),
        "v": _w((lambda *s: torch.randn(*s, dtype=torch.bfloat16) * 0.05)(B, Hkv, Sk, D)),
    }

def reference(q, k, v):
    B, Hq, Sq, D = q.shape
    Hkv = k.shape[1]
    rep = Hq // Hkv
    k = (lambda x, n, axis: torch.repeat_interleave(x, n, dim=axis))(k, rep, axis=1)
    v = (lambda x, n, axis: torch.repeat_interleave(x, n, dim=axis))(v, rep, axis=1)
    scale = D ** -0.5
    scores = torch.einsum("bhqd,bhkd->bhqk", q, k) * scale
    p = _softmax(scores, axis=-1)
    return torch.einsum("bhqk,bhkd->bhqd", p, v)
```

```python
import re
REG = re.compile(r"\b([va])\[(\d+):(\d+)\]|\b([va])(\d+)\b")
def regs(op):
    out = []
    for m in REG.finditer(op):
        if m.group(1): out += [(m.group(1), i) for i in range(int(m.group(2)), int(m.group(3)) + 1)]
        else: out.append((m.group(4), int(m.group(5))))
    return out
TRANS = ("v_exp_f32", "v_log_f32", "v_rcp_f32", "v_rsq_f32", "v_sqrt_f32")
class Ins:
    def __init__(s, text):
        s.text = text
        t = text.split(";")[0].strip()
        p = t.split(None, 1)
        s.mn = p[0]; rest = p[1] if len(p) > 1 else ""
        ops = [o.strip() for o in re.split(r",(?![^\[]*\])", rest)] if rest else []
        s.ops = ops
        mn = s.mn
        s.w = []; s.r = []; s.c = []; s.ab = []
        s.kind = "other"
        if mn.startswith("v_mfma"):
            s.kind = "mfma"; s.w = regs(ops[0]); s.ab = regs(ops[1]) + regs(ops[2]); s.c = regs(ops[3]); s.r = s.ab + s.c
            s.passes = 4 if "16x16x32" in mn else 8
        elif mn.startswith("ds_read"):
            s.kind = "dsr"; s.w = regs(ops[0]); s.r = regs(ops[1])
        elif mn.startswith("ds_write"):
            s.kind = "dsw"; s.r = sum((regs(o) for o in ops), [])
        elif mn.startswith("buffer_load") or mn.startswith("global_load"):
            if t.endswith(" lds"):
                s.kind = "dma"; s.r = regs(ops[0])
            else:
                s.kind = "vld"; s.w = regs(ops[0]); s.r = regs(ops[1])
        elif mn.startswith("buffer_store") or mn.startswith("global_store"):
            s.kind = "vst"; s.r = regs(ops[0]) + regs(ops[1]); s.data = regs(ops[0])
        elif mn.startswith("v_permlane"):
            s.kind = "perm"; s.w = regs(ops[0]) + regs(ops[1]); s.r = list(s.w)
        elif mn.startswith("v_cmp"):
            s.kind = "valu"; s.r = sum((regs(o) for o in ops[1:]), [])
        elif mn.startswith("v_readfirstlane") or mn.startswith("v_readlane"):
            s.kind = "rdlane"; s.r = regs(ops[1])
        elif mn.startswith("v_"):
            s.kind = "trans" if mn.replace("_e64", "").replace("_e32", "") in TRANS else "valu"
            s.w = regs(ops[0]); s.r = sum((regs(o) for o in ops[1:]), [])
            if mn.startswith("v_fmac"): s.r += s.w
        elif mn == "s_waitcnt": s.kind = "wait"
        elif mn == "s_nop": s.kind = "nop"
        elif mn == "s_barrier": s.kind = "barrier"
        elif mn.startswith("s_"): s.kind = "salu"
def check(lines, name=""):
    errs = []
    pos = 0
    lastw = {}
    lastc = {}
    lastst = {}
    lg = []
    vm = []
    m0pos = -10
    VALU = ("valu", "trans", "perm", "rdlane")
    for t in lines:
        t0 = t.split(";")[0].strip()
        if not t0 or t0.endswith(":") or t0.startswith("."): continue
        i = Ins(t)
        def err(msg): errs.append("%s: @%d '%s': %s" % (name, pos, t0, msg))
        if i.kind == "wait":
            m = re.search(r"lgkmcnt\((\d+)\)", t0)
            if m:
                n = int(m.group(1)); lg = lg[len(lg) - n:] if n < len(lg) and n > 0 else ([] if n == 0 else lg)
            m = re.search(r"vmcnt\((\d+)\)", t0)
            if m:
                n = int(m.group(1)); vm = vm[len(vm) - n:] if n < len(vm) and n > 0 else ([] if n == 0 else vm)
        pend = set(r for o in lg for r in o.w) | set(r for o in vm for r in o.w)
        for r in i.r + i.w:
            if r in pend: err("touches %s%d with load outstanding" % r)
        for r in i.r:
            if r in lastw:
                p, w = lastw[r]; d = pos - p - 1
                if i.kind == "mfma":
                    if w.kind in VALU and d < 2: err("VALU->MFMA %s%d d=%d" % (r + (d,)))
                    if w.kind == "mfma":
                        need = 8 if w.passes == 4 else 12
                        if r in i.ab and d < need: err("MFMA->MFMA AB %s%d d=%d" % (r + (d,)))
                        if r in i.c and r not in i.ab and not (w.w == i.c and w.passes == i.passes):
                            if d < need - 2: err("MFMA->MFMA C overlap %s%d d=%d" % (r + (d,)))
                else:
                    if w.kind == "mfma" and d < (8 if w.passes == 4 else 12): err("MFMA->%s read %s%d d=%d" % ((i.kind,) + r + (d,)))
                    if w.kind == "trans" and i.kind in ("valu", "perm", "rdlane") and d < 1: err("trans->valu %s%d" % r)
                    if w.kind in VALU and i.kind == "perm" and d < 2: err("VALU->permlane %s%d d=%d" % (r + (d,)))
                    if w.kind in VALU and i.kind == "rdlane" and d < 1: err("VALU->readlane %s%d" % r)
        for r in i.w:
            if i.kind != "mfma" and r in lastw:
                p, w = lastw[r]; d = pos - p - 1
                if w.kind == "mfma" and d < (8 if w.passes == 4 else 12): err("MFMA->%s WAW %s%d d=%d" % ((i.kind,) + r + (d,)))
            if i.kind in VALU and r in lastc:
                p, w = lastc[r]; d = pos - p - 1
                if d < (3 if w.passes == 4 else 7): err("MFMA C read -> VALU write %s%d d=%d" % (r + (d,)))
            if r in lastst and pos - lastst[r] - 1 < 2: err("store data WAR %s%d" % r)
        if i.kind == "dma" and pos - m0pos - 1 < 1: err("m0 -> dma")
        if i.kind == "salu" and i.ops and i.ops[0] == "m0": m0pos = pos
        for r in i.w: lastw[r] = (pos, i)
        for r in i.c: lastc[r] = (pos, i)
        if i.kind == "vst" and len(i.data) > 2:
            for r in i.data: lastst[r] = pos
        if i.kind in ("dsr", "dsw"): lg.append(i)
        if i.kind in ("vld", "vst", "dma"): vm.append(i)
        if i.kind == "barrier":
            if any(o.kind in ("dsr", "dsw") for o in lg): err("barrier with LDS ops outstanding (%d)" % len(lg))
        if i.kind == "nop": pos += int(i.ops[0], 0) + 1
        else: pos += 1
    return errs
```

```python
import sys, struct, math
import hazard
OPT = dict(stamp=0, e64=0, ldnt="nt", qnt="nt", stnt="nt", thr=40, qat=13, sparse=1, pk=0)
out = sys.argv[1]
for a in sys.argv[2:]:
    k, v = a.split("="); OPT[k] = int(v) if v.lstrip("-").isdigit() else v
def fbits(x): return struct.unpack("<I", struct.pack("<f", x))[0]
def flag(s): return "" if s in ("-", "") else " " + s.replace("+", " ")
NAME = "standalone__gqa_softmax__near_ridge_kernel"

UNIT = 1056; SLOT = 16 * UNIT; HALF = 8 * UNIT
KB = 0; VB = 4 * SLOT; XB = 8 * SLOT; XW = 4352; FB = XB + 4 * XW
LDS_BYTES = 163840
assert FB + 32 <= LDS_BYTES
def V(n, w=1): return "v%d" % n if w == 1 else "v[%d:%d]" % (n, n + w - 1)
def A(n, w=1): return "a%d" % n if w == 1 else "a[%d:%d]" % (n, n + w - 1)
vQ = 0; vS = 80; vP = 104; vC = 116
vKa, vKb, vVa, vVb, vDMA, vQoff, vOoff, vX = 136, 137, 138, 139, 140, 141, 142, 143
vOnes = 144; vL0 = 148; vT = 152
vO = 160
aO = 0; aL = 64; aQ = 80; aK = 160; aV = 192
def Qf(q, ks): return V(vQ + 16 * q + 4 * ks, 4)
def Sf(b, j): return vS + 8 * b + 4 * j
def Pf(b): return vP + 4 * b
def Of(q, dt): return V(vO + 32 * q + 4 * dt, 4) if q < 3 else A(aO + 32 * (q - 3) + 4 * dt, 4)
def Lf(q): return V(vL0, 4) if q == 0 else A(aL + 4 * (q - 1), 4)
def Kf(j, ks): return A(aK + 16 * j + 4 * ks, 4)
def Vf(h, dt): return aV + 32 * h + 4 * dt
sW, sG, sM, sD, sCnt, sPlus, sMinus, sHd, sMode, sMask, sC, sQ0, sQ4, sWarm, sPar, sThr, sHi = \
    ["s%d" % i for i in range(20, 37)]
SQ, SK, SV, SO = "s[4:7]", "s[8:11]", "s[12:15]", "s[16:19]"
E = "_e64" if OPT["e64"] else ""

def mf(d, a, b, c): return "v_mfma_f32_16x16x32_bf16 %s, %s, %s, %s" % (d, a, b, c)
QK_ORDER = [(0, 0), (0, 1), (0, 2), (0, 3), (1, 3), (1, 2), (1, 1), (1, 0)]
def qk_block(q, b):
    r = []
    for i, (j, ks) in enumerate(QK_ORDER):
        s = V(Sf(b, j), 4)
        r.append(mf(s, Kf(j, ks), Qf(q, ks), V(vC + 4 * q, 4) if i % 4 == 0 else s))
    return r
def pv_block(q, h, b, zero):
    r = []
    for dt in range(8):
        r.append(mf(Of(q, dt), A(Vf(h, dt), 4), V(Pf(b), 4), "0" if zero else Of(q, dt)))
    r.append(mf(Lf(q), V(vOnes, 4), V(Pf(b), 4), "0" if zero else Lf(q)))
    return r
def exps(b): return ["v_exp_f32%s %s, %s" % (E, V(Sf(b, 0) + i), V(Sf(b, 0) + i)) for i in range(8)]
def cvts(b): return ["v_cvt_pk_bf16_f32 %s, %s, %s" % (V(Pf(b) + k), V(Sf(b, 0) + 2 * k), V(Sf(b, 0) + 2 * k + 1)) for k in range(4)]
def kreads(h):
    return ["ds_read_b128 %s, %s offset:%d" % (Kf(j, ks), V(vKa if h == 0 else vKb), j * 512 + ks * 64) for (j, ks) in QK_ORDER]
def vreads(h):
    return ["ds_read_b64_tr_b16 %s, %s offset:%d" % (A(Vf(h, dt) + 2 * j, 2), V(vVa if h == 0 else vVb), j * 512 + dt * 32)
            for dt in range(8) for j in range(2)]
def dma(kv, k): return "buffer_load_dwordx4 %s, %s, %s offen offset:%d%s lds" % (V(vDMA), SV if kv else SK, sG, k * 1024, flag(OPT["ldnt"]))
def setm0(kv, k): return "s_add_u32 m0, %s, %d" % (sM, kv * VB + k * 32)
def qloads():
    r = []
    for q in range(5):
        if q < 4: r.append("s_add_u32 s41, s40, %d" % (q * 4096))
        else: r.append("s_add_u32 s41, s42, 0")
        for ks in range(4):
            r.append("buffer_load_dwordx4 %s, %s, %s, s41 offen offset:%d%s" % (A(aQ + 16 * q + 4 * ks, 4), V(vQoff), SQ, ks * 64, flag(OPT["qnt"])))
    return r

QKU = {0: (1, 0), 1: (1, 1), 2: (1, 2), 3: (1, 3), 4: (0, 0), 5: (0, 1), 6: (0, 2), 7: (0, 3), 8: (0, 4)}
def period(p, qk=True, sm=True, pv=True, zero=False, smalls=(), pre=(), prepv=(), kburst=None):
    mf_q = qk_block(QKU[p][1], p % 3) if qk else []
    hp, qp = QKU[(p - 2) % 9]
    mf_p = pv_block(qp, hp, (p - 2) % 3, zero) if pv else []
    ex = exps((p - 1) % 3) if sm else []
    cv = cvts((p - 1) % 3) if sm else []
    gaps = [[] for _ in range(17)]
    for i, x in enumerate(ex): gaps[2 * i].append(x)
    for k, x in enumerate(cv): gaps[4 * k + 3].append(x)
    sg = [1, 3, 5, 7, 9, 11, 13, 15, 16]
    if kburst:
        for i, g in enumerate([1, 1, 3, 5, 5, 7, 9, 9]): gaps[g].append(kburst[i])
    free = []
    for g in sg: free += [g] * (2 - len(gaps[g]))
    sm_l = list(smalls)
    assert len(sm_l) <= len(free), (p, len(sm_l), len(free))
    n = len(sm_l)
    for i, x in enumerate(sm_l):
        gaps[free[(i * len(free)) // n]].append(x)
    r = list(pre)
    for g in range(17):
        if g == 8: r += list(prepv)
        if g < 8 and qk: r.append(mf_q[g])
        if g >= 8 and pv: r.append(mf_p[g - 8])
        for x in gaps[g]:
            if x.startswith("v_cvt_pk") and r and r[-1].startswith("v_exp"): r.append("s_nop 0")
            r.append(x)
    return r

def dma_smalls(kv):
    r = []
    for k in range(4): r += [setm0(kv, k), dma(kv, k)]
    return r
def fix_m0(lines):
    r = []
    for t in lines:
        if t.endswith(" lds") and r and r[-1].startswith("s_add_u32 m0"):
            if len(r) >= 2 and not r[-2].endswith(" lds") and not r[-2].endswith(":") and not r[-2].startswith("s_") :
                r[-1], r[-2] = r[-2], r[-1]
            else: r.append("s_nop 0")
        r.append(t)
    return r
SYNC = ["s_waitcnt vmcnt(16) lgkmcnt(0)", "s_barrier"]
ADV = ["s_add_u32 %s, %s, 1" % (sCnt, sCnt), "s_and_b32 s40, %s, 3" % sCnt, "s_cselect_b32 %s, %s, %s" % (sD, sPlus, sMinus)]
def p01(zero, qhook):
    a = ["v_add_u32 %s, %s, %s" % (V(r), sD, V(r)) for r in (vKa, vKb, vVa, vVb)]
    pre = []
    if qhook: pre = ["s_cmp_eq_u32 %s, %d" % (sCnt, OPT["qat"]), "s_cbranch_scc1 L_qpre", "L_qpre_ret:"]
    r = period(0, zero=zero, pre=pre, smalls=dma_smalls(0) + a[:2])
    r += period(1, zero=zero, smalls=dma_smalls(1) + a[2:] + ["s_add_u32 %s, %s, %s" % (sM, sM, sD), "s_add_u32 %s, %s, 16384" % (sG, sG)])
    return fix_m0(r)
def loop_body():
    va, vb = vreads(0), vreads(1)
    r = period(2, smalls=va[:6] + ADV)
    r += period(3, kburst=kreads(0))
    r += period(4, pre=["s_waitcnt lgkmcnt(0)"], smalls=va[6:11])
    r += period(5, smalls=va[11:16])
    p6 = period(6, smalls=vb[:8], prepv=["WAITVA"])
    n = sum(1 for t in p6[:p6.index("WAITVA")] if t.startswith("ds_read"))
    p6[p6.index("WAITVA")] = "s_waitcnt lgkmcnt(%d)" % n
    r += p6
    r += period(7, smalls=vb[8:])
    r += period(8, kburst=kreads(1))
    r += SYNC
    r += p01(False, True)
    return r
def xlane_max(x, t):
    return ["v_mov_b32 %s, %s" % (V(t), V(x)), "s_nop 1", "v_permlane16_swap_b32 %s, %s" % (V(x), V(t)),
            "v_max_f32 %s, %s, %s" % (V(x), V(x), V(t)), "v_mov_b32 %s, %s" % (V(t), V(x)), "s_nop 1",
            "v_permlane32_swap_b32 %s, %s" % (V(x), V(t))]
def interleave(seqs):
    r = []
    n = max(len(s) for s in seqs)
    for i in range(n):
        for s in seqs:
            if i < len(s) and not s[i].startswith("s_nop"): r.append(s[i])
    return r
def set_cinit(xs, ts):
    seqs = []
    for q in range(5):
        s = xlane_max(xs[q], ts[q])
        s += ["v_min_f32_e64 %s, -%s, -%s" % (V(vC + 4 * q + i), V(xs[q]), V(ts[q])) for i in range(4)]
        seqs.append(s)
    return interleave(seqs)
def mest_reads():
    return ["v_min_u32 %s, %s, %s" % (V(vX), V(vKa), V(vKb))] + \
           ["ds_read_b128 %s, %s offset:%d" % (A(Vf(1, ks), 4), V(vX), ks * 64) for ks in range(4)]
def mest():
    r = []
    for q in range(5):
        s = V(vS + 4 * q, 4)
        for ks in range(4): r.append(mf(s, A(Vf(1, ks), 4), Qf(q, ks), "0" if ks == 0 else s))
    r.append("s_nop 3")
    for q in range(5):
        b = vS + 4 * q
        r.append("v_max3_f32 %s, %s, %s, %s" % (V(b), V(b), V(b + 1), V(b + 2)))
    for q in range(5):
        b = vS + 4 * q
        r.append("v_max_f32 %s, %s, %s" % (V(b), V(b), V(b + 3)))
    r += set_cinit([vS + 4 * q for q in range(5)], [vS + 4 * q + 1 for q in range(5)])
    return r
def pro_a():
    return mest_reads() + kreads(0) + ["s_waitcnt lgkmcnt(8)"]
def pro_b():
    va, vb = vreads(0), vreads(1)
    r = period(4, sm=False, pv=False, pre=["s_waitcnt lgkmcnt(0)"], smalls=va[:8] + ADV)
    r += period(5, pv=False, smalls=va[8:16])
    p6 = period(6, zero=True, smalls=vb[:8], prepv=["WAITVA"])
    n = sum(1 for t in p6[:p6.index("WAITVA")] if t.startswith("ds_read"))
    p6[p6.index("WAITVA")] = "s_waitcnt lgkmcnt(%d)" % n
    r += p6
    r += period(7, zero=True, smalls=vb[8:])
    r += period(8, zero=True, kburst=kreads(1))
    r += SYNC
    r += p01(True, False)
    return r
def xwrite(par):
    r = []
    for i in range(4):
        r.append("ds_write_b128 %s, %s offset:%d" % (V(vX), Of(4, (4 if par == 0 else 0) + i), i * 1024))
    return r
def epi_a():
    return period(2, smalls=["s_mul_i32 s40, %s, %d" % (sW, XW), "s_add_u32 s40, s40, %d" % XB, "v_add_u32 %s, s40, %s" % (V(vX), V(vDMA)),
                             "v_lshrrev_b32 %s, 2, %s" % (V(vT), V(vDMA)), "v_add_u32 %s, s40, %s" % (V(vT), V(vT))]) + \
           ["ds_write_b32 %s, %s offset:4096" % (V(vT), A(aL + 12))]
def epi_b():
    r = period(3, smalls=["s_xor_b32 s41, %s, 1" % sW, "s_mul_i32 s41, s41, %d" % XW, "s_add_u32 s41, s41, %d" % XB])
    r += period(4, qk=False)
    r += period(5, qk=False, sm=False, pre=["s_nop 0"])
    return r
def norm_tile(src, rl, soff, tmp, npair, pair0=0):
    r = []
    for p in range(npair):
        t = tmp[p % len(tmp)]
        regs = [src(8 * p + i) for i in range(8)]
        for x in regs: r.append("v_mul_f32 %s, %s, %s" % (V(x), V(rl), V(x)))
        for k in range(4): r.append("v_cvt_pk_bf16_f32 %s, %s, %s" % (V(t + k), V(regs[2 * k]), V(regs[2 * k + 1])))
        r.append("s_nop 0")
        r.append("v_permlane16_swap_b32 %s, %s" % (V(t), V(t + 2)))
        r.append("v_permlane16_swap_b32 %s, %s" % (V(t + 1), V(t + 3)))
        r.append("buffer_store_dwordx4 %s, %s, %s, %s offen offset:%d%s" % (V(t, 4), V(vOoff), SO, soff, (pair0 + p) * 64, flag(OPT["stnt"])))
    return r
def epilogue_a():
    r = ["s_waitcnt lgkmcnt(0)", "s_barrier"]
    r += ["v_add_u32 %s, s41, %s" % (V(vX), V(vDMA)), "v_lshrrev_b32 %s, 2, %s" % (V(vT), V(vDMA)), "v_add_u32 %s, s41, %s" % (V(vT), V(vT))]
    for i in range(4): r.append("ds_read_b128 %s, %s offset:%d" % (V(vS + 4 * i, 4), V(vX), i * 1024))
    r.append("ds_read_b32 %s, %s offset:4096" % (V(vS + 16), V(vT)))
    r.append("s_mul_i32 s42, %s, %d" % (sHd, 288 * 256))
    r.append("s_add_u32 s43, s42, %s" % sQ0)
    r.append("s_add_u32 s47, s42, %s" % sQ4)
    r += ["s_add_u32 s44, s43, 4096", "s_add_u32 s45, s43, 8192", "s_add_u32 s46, s43, 12288"]
    r.append("v_rcp_f32 %s, %s" % (V(vT + 6), V(vL0)))
    for q in range(1, 5): r.append("v_accvgpr_read_b32 %s, %s" % (V(vT + 1 + q), A(aL + 4 * (q - 1))))
    tmp = [vQ + 64, vQ + 68, vQ + 72, vQ + 76]
    r += norm_tile(lambda i: vO + i, vT + 6, "s43", tmp, 4)
    r.append("v_rcp_f32 %s, %s" % (V(vT + 7), V(vT + 2)))
    r.append("v_rcp_f32 %s, %s" % (V(vT + 6), V(vT + 3)))
    r += norm_tile(lambda i: vO + 32 + i, vT + 7, "s44", tmp, 4)
    r += norm_tile(lambda i: vO + 64 + i, vT + 6, "s45", tmp, 4)
    r.append("v_rcp_f32 %s, %s" % (V(vT + 7), V(vT + 4)))
    for i in range(32): r.append("v_accvgpr_read_b32 %s, %s" % (V(vQ + i), A(aO + i)))
    r += norm_tile(lambda i: vQ + i, vT + 7, "s46", tmp, 4)
    r.append("v_add_f32 %s, %s, %s" % (V(vT + 2), V(vT + 2), V(vL0)))
    r.append("v_add_f32 %s, %s, %s" % (V(vT + 3), V(vT + 3), V(vT + 4)))
    r.append("s_waitcnt lgkmcnt(0)")
    r.append("v_add_f32 %s, %s, %s" % (V(vT + 5), V(vT + 5), V(vS + 16)))
    r.append("v_add_f32 %s, %s, %s" % (V(vT + 2), V(vT + 2), V(vT + 3)))
    r.append("v_rcp_f32 %s, %s" % (V(vT + 6), V(vT + 5)))
    r.append("v_add_f32 %s, %s, %s" % (V(vT + 2), V(vT + 2), V(vT + 5)))
    r.append("v_cmp_ngt_f32 vcc, %s, %s" % (sThr, V(vT + 2)))
    r.append("s_lshl_b32 s40, %s, 2" % sHd)
    r.append("s_add_u32 s40, s40, %s" % sW)
    r.append("s_lshl_b32 s40, s40, 2")
    r.append("s_add_u32 s40, s40, %d" % FB)
    r.append("s_or_b32 s41, vcc_lo, vcc_hi")
    r.append("v_mov_b32 %s, s40" % V(vT + 3))
    r.append("v_mov_b32 %s, s41" % V(vT + 4))
    r.append("ds_write_b32 %s, %s" % (V(vT + 3), V(vT + 4)))
    return r
def epilogue_keep(par):
    return ["v_accvgpr_read_b32 %s, %s" % (V(vQ + 32 + i), A(aO + 32 + 16 * par + i)) for i in range(16)]
def epilogue_b():
    r = ["v_add_f32 %s, %s, %s" % (V(vQ + 32 + i), V(vQ + 32 + i), V(vS + i)) for i in range(16)]
    r.append("s_lshl_b32 s40, %s, 7" % sPar)
    r.append("s_add_u32 s47, s47, s40")
    r += norm_tile(lambda i: vQ + 32 + i, vT + 6, "s47", [vQ + 64, vQ + 68], 2)
    return r
def qconv():
    r = []
    T = [vS + 3 * i for i in range(8)]
    for g in range(0, 80, 8):
        for i in range(8): r.append("v_accvgpr_read_b32 %s, %s" % (V(T[i]), A(aQ + g + i)))
        for i in range(8): r.append("v_lshlrev_b32 %s, 16, %s" % (V(T[i] + 1), V(T[i])))
        for i in range(8): r.append("v_and_b32 %s, %s, %s" % (V(T[i]), sHi, V(T[i])))
        for i in range(8): r.append("v_mul_f32 %s, %s, %s" % (V(T[i] + 1), sC, V(T[i] + 1)))
        for i in range(8): r.append("v_mul_f32 %s, %s, %s" % (V(T[i]), sC, V(T[i])))
        for i in range(8): r.append("v_cvt_pk_bf16_f32 %s, %s, %s" % (V(vQ + g + i), V(T[i] + 1), V(T[i])))
    return r
def cold_dma():
    r = []
    for t in range(4):
        for kv in range(2):
            for k in range(4):
                r += ["s_add_u32 m0, %s, %d" % (sM, t * SLOT + kv * VB + k * 32), "s_nop 0", dma(kv, k)]
        r.append("s_add_u32 %s, %s, 16384" % (sG, sG))
    return r
def cold_init():
    return ["s_lshl_b32 %s, %s, 4" % (sCnt, sHd), "s_lshl_b32 %s, %s, 18" % (sG, sHd), "s_lshl_b32 s40, %s, 12" % sW,
            "s_add_u32 %s, %s, s40" % (sG, sG), "s_mul_i32 %s, %s, %d" % (sM, sW, 4 * UNIT), "s_mov_b32 %s, 0" % sWarm,
            "s_mul_i32 s42, %s, %d" % (sHd, 288 * 256), "s_add_u32 s40, s42, %s" % sQ0, "s_add_u32 s42, s42, %s" % sQ4]
def setup():
    r = ["s_cmp_ge_u32 s2, 256", "s_cbranch_scc1 L_end"]
    if OPT["stamp"]: r += ["s_memtime s[60:61]", "s_memrealtime s[62:63]"]
    r += ["s_load_dwordx4 s[44:47], s[0:1], 0", "s_load_dwordx4 s[48:51], s[0:1], 16"]
    if OPT["stamp"]: r += ["s_load_dwordx2 s[64:65], s[0:1], 40"]
    r += ["v_lshrrev_b32 v1, 6, v0", "v_and_b32 v0, 63, v0", "v_readfirstlane_b32 %s, v1" % sW]
    r += ["v_lshlrev_b32 %s, 4, v0" % V(vDMA)]
    r += ["v_and_b32 v1, 15, v0", "v_lshlrev_b32 v1, 8, v1", "v_lshrrev_b32 v2, 4, v0", "v_lshl_add_u32 %s, v2, 4, v1" % V(vQoff)]
    r += ["s_mul_i32 s40, s2, %d" % (2 * 288 * 256), "s_lshl_b32 s41, s2, 19",
          "s_lshl_b32 %s, %s, 14" % (sQ0, sW), "s_lshr_b32 %s, %s, 1" % (sQ4, sW), "s_lshl_b32 %s, %s, 12" % (sQ4, sQ4), "s_add_u32 %s, %s, 65536" % (sQ4, sQ4),
          "s_and_b32 %s, %s, 1" % (sPar, sW), "s_mov_b32 %s, 0" % sHd, "s_mov_b32 %s, 0" % sMode,
          "s_mov_b32 s6, %d" % (2 * 288 * 256), "s_mov_b32 s7, 0x20000", "s_mov_b32 s10, 0x80000", "s_mov_b32 s11, 0x20000",
          "s_mov_b32 s14, 0x80000", "s_mov_b32 s15, 0x20000", "s_mov_b32 s18, %d" % (2 * 288 * 256), "s_mov_b32 s19, 0x20000",
          "s_waitcnt lgkmcnt(0)",
          "s_add_u32 s4, s44, s40", "s_addc_u32 s5, s45, 0", "s_add_u32 s8, s46, s41", "s_addc_u32 s9, s47, 0",
          "s_add_u32 s12, s48, s41", "s_addc_u32 s13, s49, 0", "s_add_u32 s16, s50, s40", "s_addc_u32 s17, s51, 0"]
    return r
def setup2():
    r = ["v_lshrrev_b32 v0, 4, %s" % V(vDMA)]
    r += ["s_mov_b32 %s, %d" % (sPlus, SLOT), "s_mov_b32 %s, %d" % (sMinus, -3 * SLOT), "s_mov_b32 %s, 0x%08x" % (sC, fbits(math.log2(math.e) / math.sqrt(128.0))),
          "s_mov_b32 %s, 0x%08x" % (sThr, fbits(2.0 ** OPT["thr"])), "s_mov_b32 %s, 0xffff0000" % sHi, "s_movk_i32 s43, %d" % UNIT,
          "s_mul_i32 s40, %s, %d" % (sPar, HALF), "s_sub_u32 s41, %d, s40" % HALF]
    r += ["v_and_b32 v1, 7, v0", "v_mul_lo_u32 v1, v1, s43", "v_bfe_u32 v2, v0, 3, 1", "v_lshl_add_u32 v1, v2, 8, v1",
          "v_lshrrev_b32 v2, 4, v0", "v_lshl_add_u32 v1, v2, 4, v1",
          "v_add_u32 %s, s40, v1" % V(vKa), "v_add_u32 %s, s41, v1" % V(vKb)]
    r += ["v_bfe_u32 v1, v0, 2, 3", "v_mul_lo_u32 v1, v1, s43", "v_lshrrev_b32 v2, 5, v0", "v_lshl_add_u32 v1, v2, 8, v1",
          "v_and_b32 v2, 3, v0", "v_lshl_add_u32 v1, v2, 3, v1", "v_add_u32 v1, %d, v1" % VB,
          "v_add_u32 %s, s40, v1" % V(vVa), "v_add_u32 %s, s41, v1" % V(vVb)]
    r += ["v_and_b32 v1, 15, v0", "v_lshlrev_b32 v1, 8, v1", "v_bfe_u32 v2, v0, 4, 1", "v_lshl_add_u32 v1, v2, 5, v1",
          "v_lshrrev_b32 v2, 5, v0", "v_lshl_add_u32 %s, v2, 4, v1" % V(vOoff)]
    r += ["v_mov_b32 v2, 0x3f803f80"]
    if OPT["sparse"]:
        r += ["v_and_b32 v1, 3, v0", "v_cmp_eq_u32 vcc, 0, v1", "s_nop 1", "v_cndmask_b32 v2, 0, v2, vcc"]
    r += ["v_mov_b32 %s, v2" % V(vOnes + i) for i in range(4)]
    return r
def maxpass_init():
    return ["v_mov_b32 %s, 0xff800000" % V(vP + q) for q in range(5)] + ["s_mov_b32 s48, 0"]
def maxpass_body():
    r = []
    for k in range(4): r += ["s_add_u32 m0, %s, %d" % (sM, k * 32), "s_nop 0", dma(0, k)]
    r += ["s_add_u32 %s, %s, 16384" % (sG, sG), "s_waitcnt vmcnt(0)", "s_barrier"]
    for h in range(2):
        r += kreads(h) + ["s_waitcnt lgkmcnt(0)"]
        for j in range(2):
            for q in range(5):
                s = V(vS + 4 * q, 4)
                for ks in range(4): r.append(mf(s, Kf(j, ks), Qf(q, ks), "0" if ks == 0 else s))
            r.append("s_nop 7")
            for q in range(5):
                b = vS + 4 * q
                r.append("v_max3_f32 %s, %s, %s, %s" % (V(vP + q), V(vP + q), V(b), V(b + 1)))
                r.append("v_max3_f32 %s, %s, %s, %s" % (V(vP + q), V(vP + q), V(b + 2), V(b + 3)))
    r += ["s_barrier", "s_add_u32 s48, s48, 1", "s_cmp_lt_u32 s48, 16"]
    return r
def maxpass_fin():
    return set_cinit([vP + q for q in range(5)], [vP + 5 + q for q in range(5)]) + ["s_sub_u32 %s, %s, %d" % (sG, sG, 16 * 16384)]

B = {}
B["setup"] = setup(); B["cold_init"] = cold_init(); B["qloads"] = qloads(); B["cold_dma"] = cold_dma(); B["setup2"] = setup2()
B["qconv"] = qconv(); B["pro_a"] = pro_a(); B["mest"] = mest(); B["pro_b"] = pro_b(); B["loop"] = loop_body()
B["epi_a"] = epi_a(); B["xw0"] = xwrite(0); B["xw1"] = xwrite(1); B["epi_b"] = epi_b()
B["ep_a"] = epilogue_a(); B["keep0"] = epilogue_keep(0); B["keep1"] = epilogue_keep(1); B["ep_b"] = epilogue_b()
B["mx_i"] = maxpass_init(); B["mx_b"] = maxpass_body(); B["mx_f"] = maxpass_fin()
QPRE = ["s_add_u32 s40, %s, %d" % (sQ0, 288 * 256), "s_add_u32 s42, %s, %d" % (sQ4, 288 * 256)] + B["qloads"]

L = []
e = L.append
def blk(n): L.extend(B[n])
blk("setup")
e("L_cold:")
blk("cold_init"); blk("qloads")
e("s_cmp_eq_u32 %s, 0" % sMode); e("s_cbranch_scc0 L_cold_redo")
blk("cold_dma")
blk("setup2")
e("s_waitcnt vmcnt(32)")
e("L_qconv:")
blk("qconv")
e("s_cmp_eq_u32 %s, 0" % sMode); e("s_cbranch_scc0 L_maxpass")
e("s_cmp_eq_u32 %s, 0" % sWarm); e("s_cbranch_scc0 L_pro")
e("L_coldwait:")
e("s_waitcnt vmcnt(24)"); e("s_barrier")
e("L_pro:")
blk("pro_a")
e("s_cmp_eq_u32 %s, 0" % sMode); e("s_cbranch_scc0 L_pro_b")
blk("mest")
e("L_pro_b:")
blk("pro_b")
e(".p2align 3")
e("L_loop:")
blk("loop")
e("s_and_b32 s40, %s, 15" % sCnt); e("s_cbranch_scc1 L_loop")
blk("epi_a")
e("s_cmp_eq_u32 %s, 0" % sPar); e("s_cbranch_scc0 L_xw1")
blk("xw0")
e("L_xw_ret:")
blk("epi_b")
blk("ep_a")
e("s_cmp_eq_u32 %s, 0" % sPar); e("s_cbranch_scc0 L_keep1")
blk("keep0")
e("L_keep_ret:")
blk("ep_b")
e("s_or_b32 s40, %s, %s" % (sHd, sMode)); e("s_cbranch_scc1 L_finish")
e("s_mov_b32 %s, 1" % sHd); e("s_mov_b32 %s, 1" % sWarm); e("s_branch L_qconv")
e("L_finish:")
e("s_waitcnt lgkmcnt(0)"); e("s_barrier")
e("s_cmp_eq_u32 %s, 0" % sMode); e("s_cbranch_scc0 L_next_redo")
e("v_mov_b32 v0, %d" % FB)
e("ds_read_b128 v[4:7], v0"); e("ds_read_b128 v[8:11], v0 offset:16"); e("s_waitcnt lgkmcnt(0)")
e("v_or3_b32 v4, v4, v5, v6"); e("v_or3_b32 v8, v8, v9, v10"); e("v_or_b32 v4, v4, v7"); e("v_or_b32 v8, v8, v11"); e("s_nop 0")
e("v_readfirstlane_b32 s40, v4"); e("v_readfirstlane_b32 s41, v8"); e("s_nop 3")
e("s_cmp_lg_u32 s40, 0"); e("s_cselect_b32 %s, 1, 0" % sMask); e("s_cmp_lg_u32 s41, 0"); e("s_cselect_b32 s41, 2, 0"); e("s_or_b32 %s, %s, s41" % (sMask, sMask))
e("L_next_redo:")
e("s_cmp_eq_u32 %s, 0" % sMask); e("s_cbranch_scc1 L_done")
e("s_ff1_i32_b32 %s, %s" % (sHd, sMask)); e("s_bitset0_b32 %s, %s" % (sMask, sHd)); e("s_mov_b32 %s, 1" % sMode)
e("s_waitcnt vmcnt(0)"); e("s_barrier")
e("s_branch L_cold")
e("L_done:")
if OPT["stamp"]:
    e("s_waitcnt vmcnt(0)")
    e("s_memtime s[66:67]\ns_memrealtime s[68:69]\ns_waitcnt lgkmcnt(0)")
    e("s_sub_u32 s66, s66, s60\ns_sub_u32 s68, s68, s62")
    e("s_getreg_b32 s58, hwreg(HW_REG_XCC_ID)\ns_and_b32 s58, s58, 15")
    e("v_mov_b32 v8, s66\nv_mov_b32 v9, s68\nv_mov_b32 v10, s62\nv_mov_b32 v11, s58")
    e("s_lshl_b32 s50, s2, 4\nv_mov_b32 v12, s50")
    e("s_mov_b32 s52, s64\ns_mov_b32 s53, s65\ns_mov_b32 s54, 4096\ns_mov_b32 s55, 0x20000")
    e("s_cmp_eq_u32 %s, 0\ns_cbranch_scc0 L_end" % sW)
    e("buffer_store_dwordx4 v[8:11], v12, s[52:55], 0 offen")
e("L_end:")
e("s_endpgm")
e("L_qpre:"); L.extend(QPRE); e("s_branch L_qpre_ret")
e("L_xw1:"); blk("xw1"); e("s_branch L_xw_ret")
e("L_keep1:"); blk("keep1"); e("s_branch L_keep_ret")
e("L_cold_redo:"); e("s_waitcnt vmcnt(0)"); e("s_branch L_qconv")
e("L_maxpass:"); blk("mx_i")
e("L_mx_loop:"); blk("mx_b"); e("s_cbranch_scc1 L_mx_loop")
blk("mx_f"); blk("cold_dma"); e("s_branch L_coldwait")

def trace(par, redo):
    t = []
    br = ["s_cmp_eq_u32 s0, 0", "s_cbranch_scc0 X"]
    def loop(n, hook):
        r = []
        for it in range(n):
            body = list(B["loop"])
            if hook and it == 1:
                k = body.index("L_qpre_ret:"); body[k:k] = QPRE + ["s_branch X"]
            r += body + br
        return r
    def head(mest_on, hook):
        return B["pro_a"] + br + (B["mest"] if mest_on else []) + B["pro_b"] + loop(5, hook) + B["epi_a"] + br + B["xw%d" % par] + B["epi_b"] + \
            B["ep_a"] + br + B["keep%d" % par] + B["ep_b"] + br
    t += B["setup"] + B["cold_init"] + B["qloads"] + br + B["cold_dma"] + B["setup2"] + ["s_waitcnt vmcnt(32)"] + B["qconv"] + br + br + ["s_waitcnt vmcnt(24)", "s_barrier"]
    t += head(True, True) + br + B["qconv"] + br + br + head(True, False)
    if redo:
        t += ["s_waitcnt lgkmcnt(0)", "s_barrier", "s_waitcnt vmcnt(0)", "s_barrier"] + B["cold_init"] + B["qloads"] + br + ["s_waitcnt vmcnt(0)"] + B["qconv"] + br
        t += B["mx_i"] + B["mx_b"] + B["mx_b"] + B["mx_f"] + B["cold_dma"] + ["s_waitcnt vmcnt(24)", "s_barrier"] + head(False, False)
    return t
errs = []
for par in (0, 1): errs += hazard.check(trace(par, True), "par%d" % par)
if errs:
    print("\n".join(errs[:40])); print(len(errs), "hazard errors"); sys.exit(1)

hdr = """; Attention forward, B=16 H=32 Sq=288 Sk=1024 D=128, bf16.  Generated by my own script (gen.py).
; One workgroup (4 waves, one per SIMD) per pair of heads; K/V streamed through an LDS ring by LDS-DMA.
; Kernarg: q(0) k(8) v(16) out(24) debug(32) ws(40)
; @launch grid=(256,1,1) block=(256,1,1) lds=%d
.amdgcn_target "amdgcn-amd-amdhsa--gfx950"
.text
.globl %s
.p2align 8
.type %s,@function
%s:
""" % (LDS_BYTES, NAME, NAME, NAME)
ftr = """.section .rodata,"a"
.p2align 6
.amdhsa_kernel %s
  .amdhsa_next_free_vgpr 512
  .amdhsa_next_free_sgpr 102
  .amdhsa_accum_offset 256
  .amdhsa_group_segment_fixed_size 0
  .amdhsa_kernarg_size 48
  .amdhsa_user_sgpr_count 2
  .amdhsa_user_sgpr_kernarg_segment_ptr 1
  .amdhsa_system_sgpr_workgroup_id_x 1
.end_amdhsa_kernel
""" % NAME
body = "\n".join(("" if l.endswith(":") else "    ") + l for t in L for l in t.split("\n"))
open(out, "w").write(hdr + body + "\n" + ftr)
print("ok: %d lines; block sizes:" % len(L), {k: len(v) for k, v in B.items()})
```

```python
import sys, struct, math
import hazard
OPT = dict(stamp=0, e64=0, ldnt="nt", qnt="nt", stnt="nt", thr=40, sparse=1, kill="", rt=0, qmask="3,5,7,9,11", vw=8)
out = sys.argv[1]
for a in sys.argv[2:]:
    k, v = a.split("="); OPT[k] = int(v) if v.lstrip("-").isdigit() else v
def fbits(x): return struct.unpack("<I", struct.pack("<f", x))[0]
def flag(s): return "" if s in ("-", "") else " " + s.replace("+", " ")
NAME = "standalone__gqa_softmax__near_ridge_kernel"

UNIT = 1056; SLOT = 16 * UNIT; HALF = 8 * UNIT
KB = 0; VB = 4 * SLOT; XB = 8 * SLOT; XW = 4352; FB = XB + 4 * XW
LDS_BYTES = 163840
assert FB + 32 <= LDS_BYTES
HB = 288 * 256
def V(n, w=1): return "v%d" % n if w == 1 else "v[%d:%d]" % (n, n + w - 1)
def A(n, w=1): return "a%d" % n if w == 1 else "a[%d:%d]" % (n, n + w - 1)
vQ = 0; vS = 80; vP = 104; vC = 116
vKa, vKb, vVa, vVb, vDMA, vQoff, vTw, vX = 136, 137, 138, 139, 140, 141, 142, 143
vOnes = 144; vL0 = 148; vT = 152
vTr = 152
vO = 160
aO = 0; aL = 64; aQ = 80; aK = 160; aV = 192
def Qf(q, ks): return V(vQ + 16 * q + 4 * ks, 4)
def Sf(b, j): return vS + 8 * b + 4 * j
def Pf(b): return vP + 4 * b
def Of(q, dt): return V(vO + 32 * q + 4 * dt, 4) if q < 3 else A(aO + 32 * (q - 3) + 4 * dt, 4)
def Lf(q): return V(vL0, 4) if q == 0 else A(aL + 4 * (q - 1), 4)
def Kf(j, ks): return A(aK + 16 * j + 4 * ks, 4)
def Vf(h, dt): return aV + 32 * h + 4 * dt
sW, sG, sM, sD, sCnt, sPlus, sMinus, sHd, sMode, sMask, sD2, sQ0, sQ4, sQm, sPar, sThr, sHi, sXo = \
    ["s%d" % i for i in range(20, 38)]
sC2 = "s[38:39]"
SQ, SK, SV, SO = "s[4:7]", "s[8:11]", "s[12:15]", "s[16:19]"
E = "_e64" if OPT["e64"] else ""

def mf(d, a, b, c): return "v_mfma_f32_16x16x32_bf16 %s, %s, %s, %s" % (d, a, b, c)
QK_ORDER = [(0, 0), (0, 1), (0, 2), (0, 3), (1, 3), (1, 2), (1, 1), (1, 0)]
def qk_block(q, b):
    r = []
    for i, (j, ks) in enumerate(QK_ORDER):
        s = V(Sf(b, j), 4)
        r.append(mf(s, Kf(j, ks), Qf(q, ks), V(vC + 4 * q, 4) if i % 4 == 0 else s))
    return r
def pv_block(q, h, b, zero):
    r = []
    for dt in range(8):
        r.append(mf(Of(q, dt), A(Vf(h, dt), 4), V(Pf(b), 4), "0" if zero else Of(q, dt)))
    r.append(mf(Lf(q), V(vOnes, 4), V(Pf(b), 4), "0" if zero else Lf(q)))
    return r
def exps(b): return ["v_exp_f32%s %s, %s" % (E, V(Sf(b, 0) + i), V(Sf(b, 0) + i)) for i in range(8)]
def cvts(b): return ["v_cvt_pk_bf16_f32 %s, %s, %s" % (V(Pf(b) + k), V(Sf(b, 0) + 2 * k), V(Sf(b, 0) + 2 * k + 1)) for k in range(4)]
def kreads(h, off=0):
    return ["ds_read_b128 %s, %s offset:%d" % (Kf(j, ks), V(vKa if h == 0 else vKb), off + j * 512 + ks * 64) for (j, ks) in QK_ORDER]
def vreads(h):
    return ["ds_read_b64_tr_b16 %s, %s offset:%d" % (A(Vf(h, dt) + 2 * j, 2), V(vVa if h == 0 else vVb), j * 512 + dt * 32)
            for dt in range(8) for j in range(2)]
def dma(kv, k): return "buffer_load_dwordx4 %s, %s, %s offen offset:%d%s lds" % (V(vDMA), SV if kv else SK, sG, k * 1024, flag(OPT["ldnt"]))
def setm0(kv, k): return "s_add_u32 m0, %s, %d" % (sM, kv * VB + k * 32)
def vadd(r): return "v_add_u32 %s, %s, %s" % (V(r), sD, V(r))

QKU = {0: (1, 0), 1: (1, 1), 2: (1, 2), 3: (1, 3), 4: (0, 0), 5: (0, 1), 6: (0, 2), 7: (0, 3), 8: (0, 4)}
def period(p, zero=False, ds=(), valu=(), salu=(), dmas=(), kburst=None, at=None):
    mfs = qk_block(QKU[p][1], p % 3)
    hp, qp = QKU[(p - 2) % 9]
    mfs += pv_block(qp, hp, (p - 2) % 3, zero)
    ex = exps((p - 1) % 3); cv = cvts((p - 1) % 3)
    at = dict(at or {})
    front = [list(at.get(g, [])) for g in range(17)]
    dsg = [[] for _ in range(17)]; vg = [[] for _ in range(17)]
    for i, x in enumerate(ex): vg[2 * i].append(x)
    for k, x in enumerate(cv): vg[4 * k + 3].append(x)
    cap = {1: 2, 3: 1, 5: 2, 7: 1, 9: 2, 11: 1, 13: 2, 15: 1, 16: 2}
    for g in at: cap.pop(g, None) if len(at[g]) > 1 else None
    if kburst:
        for i, g in enumerate([1, 1, 3, 5, 5, 7, 9, 9]): dsg[g].append(kburst[i]); cap[g] -= 1
    dg = [g for g in (13, 5, 9, 1) if cap.get(g) == 2 and not front[g]]
    dgs = sorted(dg[:len(dmas)])
    assert len(dgs) == len(dmas), (p, "dma gaps")
    for g, (m, d) in zip(dgs, dmas):
        dsg[g].append(d); cap[g] = 0
        assert not front[g - 1], (p, g)
        front[g - 1].append(m)
    free = []
    for g in sorted(cap): free += [g] * cap[g]
    n = len(ds)
    assert n + len(valu) <= len(free), (p, n, len(valu), len(free))
    fv = free[len(free) - len(valu):] if valu else []
    fd = free[:len(free) - len(valu)]
    for i, x in enumerate(ds): dsg[fd[(i * len(fd)) // n]].append(x)
    for g, x in zip(fv, valu): vg[g].append(x)
    sg = [g for g in range(17) if not front[g] and g not in dgs]
    assert len(salu) <= len(sg)
    for g, x in zip(sg, salu): front[g].append(x)
    r = []
    for g in range(17):
        r.append(mfs[g]); r += front[g] + dsg[g] + vg[g]
    return r
def count_wait(lines, marker, last_needed):
    i = lines.index(marker); j = max(k for k in range(i) if lines[k] == last_needed)
    n = sum(1 for t in lines[j + 1:i] if t.startswith("ds_"))
    lines[i] = "s_waitcnt lgkmcnt(%d)" % n
    return lines
D8 = [(setm0(kv, k), dma(kv, k)) for kv in range(2) for k in range(4)]
ADV1 = ["s_add_u32 %s, %s, 1" % (sCnt, sCnt), "s_and_b32 s40, %s, 3" % sCnt, "s_cselect_b32 %s, %s, %s" % (sD, sPlus, sMinus),
        "s_cmp_lg_u32 s40, 2", "s_cselect_b32 %s, %s, %s" % (sD2, sPlus, sMinus)]
ADV2 = ["s_add_u32 %s, %s, %s" % (sM, sM, sD2), "s_add_u32 %s, %s, 16384" % (sG, sG)]
SYNC = ["s_waitcnt vmcnt(%d)" % OPT["vw"], "s_barrier"]
def tail_periods(zero, vb, dm, hook):
    r = period(6, zero=zero, ds=vb[:6], dmas=dm[0:1], at={7: ["WAITVA"]})
    r += period(7, zero=zero, ds=vb[6:12], dmas=dm[1:2], valu=[vadd(vVa), vadd(vKa)])
    r += period(8, zero=zero, kburst=kreads(1), dmas=dm[2:3], at={16: ["WAITK1"]})
    r += period(0, zero=zero, ds=vb[12:16], dmas=dm[3:4], valu=[vadd(vKb)])
    r += period(1, zero=zero, dmas=dm[4:5], valu=[vadd(vVb)])
    at = {7: ["WAITVB"], 13: SYNC}
    sal = list(ADV2)
    if hook:
        at[14] = ["s_and_b32 s40, %s, 15" % sCnt]
    r += period(2, salu=sal, at=at)
    return r
def loop_body():
    va, vb = vreads(0), vreads(1)
    r = period(3, kburst=kreads(0), dmas=D8[0:1], salu=ADV1, at={16: ["WAITK0"]})
    r += period(4, ds=va[:8], dmas=D8[1:2], at={15: ["s_bitcmp1_b32 %s, %s" % (sQm, sCnt)], 16: ["s_cbranch_scc1 L_qpre", "L_qpre_ret:"]})
    r += period(5, ds=va[8:16], dmas=D8[2:3])
    r += tail_periods(False, vb, D8[3:8], True)
    for mk, last in (("WAITK0", kreads(0)[-1]), ("WAITVA", va[-1]), ("WAITK1", kreads(1)[-1]), ("WAITVB", vb[-1])):
        count_wait(r, mk, last)
    return r
def pro():
    va, vb = vreads(0), vreads(1)
    r = ["s_waitcnt lgkmcnt(0)"]
    m = qk_block(0, 4 % 3)
    sal = ADV1 + [D8[0][0]]
    for g in range(8):
        r.append(m[g])
        if g == 7: r.append(D8[0][1])
        else:
            if g >= 1: r.append(sal[g - 1])
            r += va[2 * g:2 * g + 2]
    m = qk_block(1, 5 % 3); ex = exps(4 % 3); cv = cvts(4 % 3)
    r += [D8[1][0], m[0], va[14], va[15], m[1], D8[1][1], m[2], D8[2][0], ex[0], m[3], ex[1], m[4], D8[2][1], m[5], ex[2], m[6], ex[3], m[7]]
    r += ex[4:8] + cv
    r += tail_periods(True, vb, D8[3:8], False)
    for mk, last in (("WAITVA", va[-1]), ("WAITK1", kreads(1)[-1]), ("WAITVB", vb[-1])):
        count_wait(r, mk, last)
    return r
def xwrite(par):
    return ["ds_write_b128 %s, %s offset:%d" % (V(vX), Of(4, (4 if par == 0 else 0) + i), i * 1024) for i in range(4)]
def epi_a():
    return ["s_xor_b32 s41, %s, 1" % sW, "s_mul_i32 s41, s41, %d" % XW, "s_add_u32 s41, s41, %d" % XB,
            "v_add_u32 %s, s41, %s" % (V(vX), V(vDMA)), "v_lshrrev_b32 %s, 2, %s" % (V(vT + 2), V(vDMA)), "v_add_u32 %s, s41, %s" % (V(vT + 3), V(vT + 2)),
            "ds_write_b32 %s, %s offset:4096" % (V(vT + 3), A(aL + 12))]
def epi_b():
    sal = ["s_mul_i32 s42, %s, %d" % (sHd, HB), "s_add_u32 s43, s42, %s" % sQ0, "s_add_u32 s47, s42, %s" % sQ4,
           "s_add_u32 s44, s43, 4096", "s_add_u32 s45, s43, 8192", "s_add_u32 s46, s43, 12288",
           "s_lshl_b32 s40, %s, 7" % sPar, "s_add_u32 s47, s47, s40"]
    r = period(3, salu=sal, valu=["v_add_u32 %s, %s, %s" % (V(vX), sXo, V(vDMA)), "v_add_u32 %s, %s, %s" % (V(vT + 3), sXo, V(vT + 2))])
    m = pv_block(2, 1, 2 % 3, False); ex = exps(3 % 3); cv = cvts(3 % 3)
    for g in range(8): r += [m[g], ex[g]]
    r += [m[8]] + cv + ["s_waitcnt lgkmcnt(0)", "s_barrier"]
    m = pv_block(3, 1, 3 % 3, False)
    f = [["ds_read_b128 %s, %s offset:%d" % (V(vS + 4 * i, 4), V(vX), i * 1024) for i in (0, 1)],
         ["ds_read_b128 %s, %s offset:%d" % (V(vS + 4 * i, 4), V(vX), i * 1024) for i in (2, 3)],
         ["ds_read_b32 %s, %s offset:4096" % (V(vS + 16), V(vT + 3)), "v_accvgpr_read_b32 %s, %s" % (V(vS + 17), A(aL))],
         ["v_rcp_f32 %s, %s" % (V(vT + 4), V(vL0))],
         ["v_rcp_f32 %s, %s" % (V(vT + 6), V(vS + 17))],
         ["v_accvgpr_read_b32 %s, %s" % (V(vS + 18), A(aL + 4)), "v_accvgpr_read_b32 %s, %s" % (V(vS + 20), A(aL + 12))],
         [], [], []]
    for g in range(9): r += [m[g]] + f[g]
    return r
def pkmul(x, r): return "v_pk_mul_f32 %s, %s, %s op_sel_hi:[1,0]" % (V(x, 2), V(x, 2), V(r, 2))
TMP = vQ + 32
def norm_w(src, rl, ndt, pre=None):
    r = []
    for dt in range(ndt):
        x = src + 4 * dt; t = TMP + 2 * dt
        if pre: r += pre(dt)
        r += [pkmul(x, rl), pkmul(x + 2, rl),
              "v_cvt_pk_bf16_f32 %s, %s, %s" % (V(t), V(x), V(x + 1)), "v_cvt_pk_bf16_f32 %s, %s, %s" % (V(t + 1), V(x + 2), V(x + 3))]
        if dt > 0: r.append("ds_write_b64 %s, %s offset:%d" % (V(vTw), V(t - 2, 2), (dt - 1) * 32))
    r.append("ds_write_b64 %s, %s offset:%d" % (V(vTw), V(TMP + 2 * (ndt - 1), 2), (ndt - 1) * 32))
    return r
def tr_reads(buf): return ["ds_read_b128 %s, %s offset:%d" % (V(vQ + 48 + 16 * buf + 4 * i, 4), V(vTr), i * 1088) for i in range(4)]
def tr_stores(buf, soff):
    return ["buffer_store_dwordx4 %s, %s, %s, %s offen offset:%d%s" % (V(vQ + 48 + 16 * buf + 4 * i, 4), V(vDMA), SO, soff, i * 1024, flag(OPT["stnt"])) for i in range(4)]
def weave(main, extra, start, step):
    r = list(main)
    for i, x in reversed(list(enumerate(extra))):
        k = min(len(main), start + i * step)
        r[k:k] = x if isinstance(x, list) else [x]
    return r
def with_stores(main, buf, soff):
    st = tr_stores(buf, soff)
    r = weave(main, [["WAITST", st[0]], st[1], st[2], st[3]], 12, 6)
    return r
def epilogue_a():
    r = norm_w(vO, vT + 4, 8) + tr_reads(0)
    r += ["v_rcp_f32 %s, %s" % (V(vT + 4), V(vS + 18)), "v_accvgpr_read_b32 %s, %s" % (V(vS + 19), A(aL + 8))]
    r += with_stores(norm_w(vO + 32, vT + 6, 8), 0, "s43"); count_wait(r, "WAITST", tr_reads(0)[-1])
    r += tr_reads(1)
    r += ["v_rcp_f32 %s, %s" % (V(vT + 6), V(vS + 19))]
    r += with_stores(norm_w(vO + 64, vT + 4, 8), 1, "s44"); count_wait(r, "WAITST", tr_reads(1)[-1])
    r += tr_reads(0)
    rd = lambda dt: ["v_accvgpr_read_b32 %s, %s" % (V(vQ + 4 * dt + i), A(aO + 4 * dt + i)) for i in range(4)]
    r += with_stores(norm_w(vQ, vT + 6, 8, rd), 0, "s45"); count_wait(r, "WAITST", tr_reads(0)[-1])
    r += tr_reads(1)
    r += ["v_add_f32 %s, %s, %s" % (V(vS + 20), V(vS + 20), V(vS + 16)),
          "v_add_f32 %s, %s, %s" % (V(vS + 17), V(vS + 17), V(vL0)),
          "v_rcp_f32 %s, %s" % (V(vT + 4), V(vS + 20)),
          "v_add_f32 %s, %s, %s" % (V(vS + 18), V(vS + 18), V(vS + 19)),
          "v_add_f32 %s, %s, %s" % (V(vS + 17), V(vS + 17), V(vS + 20)),
          "v_add_f32 %s, %s, %s" % (V(vS + 17), V(vS + 17), V(vS + 18)),
          "v_cmp_ngt_f32 vcc, %s, %s" % (sThr, V(vS + 17)),
          "s_lshl_b32 s40, %s, 2" % sHd, "s_add_u32 s40, s40, %s" % sW, "s_lshl_b32 s40, s40, 2", "s_add_u32 s40, s40, %d" % FB,
          "s_or_b32 s41, vcc_lo, vcc_hi", "v_mov_b32 %s, s40" % V(vS + 21), "v_mov_b32 %s, s41" % V(vS + 22),
          "ds_write_b32 %s, %s" % (V(vS + 21), V(vS + 22))]
    return r
def epilogue_keep(par):
    return ["v_accvgpr_read_b32 %s, %s" % (V(vQ + i), A(aO + 32 + 16 * par + i)) for i in range(16)]
def epilogue_b():
    r = ["v_pk_add_f32 %s, %s, %s" % (V(vQ + i, 2), V(vQ + i, 2), V(vS + i, 2)) for i in range(0, 16, 2)]
    st = tr_stores(1, "s46")
    r += ["s_waitcnt lgkmcnt(1)"] + weave(norm_w(vQ, vT + 4, 4), st, 0, 5)
    r += ["v_lshrrev_b32 %s, 7, %s" % (V(vS), V(vDMA)), "v_and_b32 %s, 0x70, %s" % (V(vS + 1), V(vDMA)),
          "v_lshl_add_u32 %s, %s, 8, %s" % (V(vS + 1), V(vS), V(vS + 1)), "v_lshl_add_u32 %s, %s, 4, %s" % (V(vS + 2), V(vS), V(vS + 1)),
          "v_add_u32 %s, %s, %s" % (V(vS + 2), sXo, V(vS + 2))]
    r += ["ds_read_b128 %s, %s offset:%d" % (V(vS + 4 + 4 * i, 4), V(vS + 2), i * 8 * 272) for i in range(2)]
    r += ["s_waitcnt lgkmcnt(0)"]
    r += ["buffer_store_dwordx4 %s, %s, %s, s47 offen offset:%d%s" % (V(vS + 4 + 4 * i, 4), V(vS + 1), SO, i * 2048, flag(OPT["stnt"])) for i in range(2)]
    return r
def xlane_max(x, t):
    return ["v_mov_b32 %s, %s" % (V(t), V(x)), "s_nop 1", "v_permlane16_swap_b32 %s, %s" % (V(x), V(t)),
            "v_max_f32 %s, %s, %s" % (V(x), V(x), V(t)), "v_mov_b32 %s, %s" % (V(t), V(x)), "s_nop 1",
            "v_permlane32_swap_b32 %s, %s" % (V(x), V(t))]
def cinit_seq(q, x, t):
    return xlane_max(x, t) + ["v_min_f32_e64 %s, -%s, -%s" % (V(vC + 4 * q + i), V(x), V(t)) for i in range(4)]
def mest_red(q):
    b = vP + 4 * (q % 2)
    return ["v_max3_f32 %s, %s, %s, %s" % (V(b), V(b), V(b + 1), V(b + 2)), "v_max_f32 %s, %s, %s" % (V(b), V(b), V(b + 3))] + cinit_seq(q, b, b + 1)
def mest_mfma(q):
    s = V(vP + 4 * (q % 2), 4)
    return [mf(s, A(Vf(1, ks), 4), Qf(q, ks), "0" if ks == 0 else s) for ks in range(4)]
def qconv(q):
    r = []
    for g in range(16 * q, 16 * q + 16, 8):
        T = [vS + 2 * i for i in range(8)]
        for i in range(8): r.append("v_accvgpr_read_b32 %s, %s" % (V(T[i] + 1), A(aQ + g + i)))
        for i in range(8): r.append("v_lshlrev_b32 %s, 16, %s" % (V(T[i]), V(T[i] + 1)))
        for i in range(8): r.append("v_and_b32 %s, %s, %s" % (V(T[i] + 1), sHi, V(T[i] + 1)))
        for i in range(8): r.append("v_pk_mul_f32 %s, %s, %s" % (V(T[i], 2), V(T[i], 2), sC2))
        for i in range(8): r.append("v_cvt_pk_bf16_f32 %s, %s, %s" % (V(vQ + g + i), V(T[i]), V(T[i] + 1)))
    if q > 0:
        mm = mest_mfma(q - 1)
        r = weave(r, mm, 0, 2)
        r = weave(r, [x for x in mest_red(q - 1) if not x.startswith("s_nop")], 24, 3)
    return r
def mest_reads():
    return ["v_min_u32 %s, %s, %s" % (V(vX), V(vKa), V(vKb))] + \
           ["ds_read_b128 %s, %s offset:%d" % (A(Vf(1, ks), 4), V(vX), ks * 64) for ks in range(4)] + kreads(0)
def mest_last():
    return ["s_nop 0"] + mest_mfma(4) + ["s_nop 7"] + mest_red(4) + ["s_nop 0"]
def qload(q):
    r = ["s_add_u32 s41, %s, %d" % ((sQ0, HB + q * 4096) if q < 4 else (sQ4, HB))]
    for ks in range(4):
        r.append("buffer_load_dwordx4 %s, %s, %s, s41 offen offset:%d%s" % (A(aQ + 16 * q + 4 * ks, 4), V(vQoff), SQ, ks * 64, flag(OPT["qnt"])))
    return r
def cold_init():
    return ["s_lshl_b32 %s, %s, 4" % (sCnt, sHd), "s_lshl_b32 %s, %s, 18" % (sG, sHd), "s_lshl_b32 s40, %s, 12" % sW,
            "s_add_u32 %s, %s, s40" % (sG, sG), "s_mul_i32 %s, %s, %d" % (sM, sW, 4 * UNIT),
            "s_mul_i32 s42, %s, %d" % (sHd, HB), "s_add_u32 s50, s42, %s" % sQ0, "s_add_u32 s51, s42, %s" % sQ4,
            "s_mul_i32 s52, %s, %d" % (sPar, SLOT), "s_lshr_b32 s40, %s, 1" % sW, "s_mul_i32 s40, s40, %d" % VB,
            "s_add_u32 s52, s52, s40", "s_add_u32 s52, s52, %d" % (2 * SLOT)]
def cold_q(q):
    r = []
    for k in range(4):
        r += ["s_add_u32 m0, %s, %d" % (("s52", q * 4 * UNIT + k * 32) if q < 4 else (sXo, k * 32)), "s_nop 0",
              "buffer_load_dwordx4 %s, %s, %s offen offset:%d%s lds" % (V(vDMA), SQ, "s50" if q < 4 else "s51", k * 1024, flag(OPT["qnt"]))]
    if q < 3: r.append("s_add_u32 s50, s50, 4096")
    return r
def cold_kv(kv, t):
    r = []
    for k in range(4): r += ["s_add_u32 m0, %s, %d" % (sM, t * SLOT + kv * VB + k * 32), "s_nop 0", dma(kv, k)]
    if kv == 1: r.append("s_add_u32 %s, %s, 16384" % (sG, sG))
    return r
def cold_qaddr():
    return ["v_bfe_u32 v1, %s, 6, 2" % V(vDMA), "v_mul_u32_u24 v1, %d, v1" % UNIT, "v_bfe_u32 v2, %s, 4, 2" % V(vDMA), "v_lshl_add_u32 v1, v2, 8, v1",
            "v_lshrrev_b32 v2, 8, %s" % V(vDMA), "v_lshl_add_u32 v1, v2, 4, v1", "v_add_u32 %s, s52, v1" % V(vT + 2), "v_add_u32 %s, %s, v1" % (V(vT + 3), sXo)]
def cold_rd(q):
    return ["ds_read_b128 %s, %s offset:%d" % (A(aQ + 16 * q + 4 * ks, 4), V(vT + 2 if q < 4 else vT + 3), (q * 4 * UNIT if q < 4 else 0) + ks * 64) for ks in range(4)]
def cold_hook(q):
    nxt = {0: cold_q(2), 1: cold_q(4), 2: cold_kv(1, 0), 3: cold_kv(0, 1), 4: cold_kv(1, 1)}[q]
    r = ["s_waitcnt vmcnt(8)"] + nxt + cold_rd(q)
    if q == 1: r = ["s_waitcnt vmcnt(8)"] + cold_q(3) + ["s_barrier"] + mest_reads() + r
    return r + ["s_waitcnt lgkmcnt(0)"]
def cold_fin():
    return ["s_add_u32 %s, %s, %d" % (sM, sM, 2 * SLOT), "s_waitcnt vmcnt(8)", "s_barrier"]
def setup():
    r = ["s_cmp_ge_u32 s2, 256", "s_cbranch_scc1 L_end"]
    if OPT["stamp"]: r += ["s_memtime s[60:61]", "s_memrealtime s[62:63]"]
    r += ["s_load_dwordx4 s[44:47], s[0:1], 0", "s_load_dwordx4 s[48:51], s[0:1], 16"]
    if OPT["stamp"]: r += ["s_load_dwordx2 s[64:65], s[0:1], 40"]
    r += ["v_lshrrev_b32 v1, 6, v0", "v_and_b32 v0, 63, v0", "v_readfirstlane_b32 %s, v1" % sW]
    r += ["v_lshlrev_b32 %s, 4, v0" % V(vDMA)]
    r += ["s_mul_i32 s40, s2, %d" % (2 * HB), "s_lshl_b32 s41, s2, 19",
          "s_mov_b32 s6, %d" % (2 * HB), "s_mov_b32 s7, 0x20000", "s_mov_b32 s10, 0x80000", "s_mov_b32 s11, 0x20000",
          "s_mov_b32 s14, 0x80000", "s_mov_b32 s15, 0x20000", "s_mov_b32 s18, %d" % (2 * HB), "s_mov_b32 s19, 0x20000",
          "s_lshl_b32 %s, %s, 14" % (sQ0, sW), "s_lshr_b32 %s, %s, 1" % (sQ4, sW), "s_lshl_b32 %s, %s, 12" % (sQ4, sQ4), "s_add_u32 %s, %s, 65536" % (sQ4, sQ4),
          "s_and_b32 %s, %s, 1" % (sPar, sW), "s_mov_b32 %s, 0" % sHd, "s_mov_b32 %s, 0" % sMode,
          "s_mul_i32 %s, %s, %d" % (sXo, sW, XW), "s_add_u32 %s, %s, %d" % (sXo, sXo, XB),
          "s_waitcnt lgkmcnt(0)",
          "s_add_u32 s4, s44, s40", "s_addc_u32 s5, s45, 0", "s_add_u32 s8, s46, s41", "s_addc_u32 s9, s47, 0",
          "s_add_u32 s12, s48, s41", "s_addc_u32 s13, s49, 0", "s_add_u32 s16, s50, s40", "s_addc_u32 s17, s51, 0"]
    return r
def setup2():
    qm = sum(1 << int(x) for x in OPT["qmask"].split(","))
    cb = fbits(math.log2(math.e) / math.sqrt(128.0))
    r = ["v_lshrrev_b32 v0, 4, %s" % V(vDMA)]
    r += ["s_mov_b32 %s, %d" % (sPlus, SLOT), "s_mov_b32 %s, %d" % (sMinus, -3 * SLOT), "s_mov_b32 s38, 0x%08x" % cb, "s_mov_b32 s39, 0x%08x" % cb,
          "s_mov_b32 %s, 0x%08x" % (sThr, fbits(2.0 ** OPT["thr"])), "s_mov_b32 %s, 0xffff0000" % sHi, "s_mov_b32 %s, 0x%x" % (sQm, qm),
          "s_mul_i32 s40, %s, %d" % (sPar, HALF), "s_sub_u32 s41, %d, s40" % HALF]
    r += ["v_and_b32 v1, 7, v0", "v_mul_u32_u24 v1, %d, v1" % UNIT, "v_bfe_u32 v2, v0, 3, 1", "v_lshl_add_u32 v1, v2, 8, v1",
          "v_lshrrev_b32 v2, 4, v0", "v_lshl_add_u32 v1, v2, 4, v1",
          "v_add_u32 %s, s40, v1" % V(vKa), "v_add_u32 %s, s41, v1" % V(vKb)]
    r += ["v_bfe_u32 v1, v0, 2, 3", "v_mul_u32_u24 v1, %d, v1" % UNIT, "v_lshrrev_b32 v2, 5, v0", "v_lshl_add_u32 v1, v2, 8, v1",
          "v_and_b32 v2, 3, v0", "v_lshl_add_u32 v1, v2, 3, v1", "v_add_u32 v1, %d, v1" % VB,
          "v_add_u32 %s, s40, v1" % V(vVa), "v_add_u32 %s, s41, v1" % V(vVb)]
    r += ["v_and_b32 v1, 15, v0", "v_lshrrev_b32 v2, 4, v0", "v_lshlrev_b32 v3, 8, v1", "v_lshl_add_u32 %s, v2, 4, v3" % V(vQoff),
          "v_mul_u32_u24 v3, 272, v1", "v_lshl_add_u32 v3, v2, 3, v3", "v_add_u32 %s, %s, v3" % (V(vTw), sXo),
          "v_mul_u32_u24 v3, 272, v2", "v_lshl_add_u32 v3, v1, 4, v3", "v_add_u32 %s, %s, v3" % (V(vTr), sXo)]
    r += ["v_mov_b32 v2, 0x3f803f80"]
    if OPT["sparse"]:
        r += ["v_and_b32 v1, 3, v0", "v_cmp_eq_u32 vcc, 0, v1", "s_nop 1", "v_cndmask_b32 v2, 0, v2, vcc"]
    r += ["v_mov_b32 %s, v2" % V(vOnes + i) for i in range(4)]
    return r
def maxpass_init():
    return ["v_mov_b32 %s, 0xff800000" % V(vP + q) for q in range(5)] + \
           ["s_mov_b32 s48, 0", "s_mov_b32 s49, %s" % sG, "s_sub_u32 %s, %s, 32768" % (sG, sG), "s_waitcnt lgkmcnt(0)"]
def maxpass_body():
    r = []
    for k in range(4): r += ["s_add_u32 m0, %s, %d" % (sM, k * 32), "s_nop 0", dma(0, k)]
    r += ["s_add_u32 %s, %s, 16384" % (sG, sG), "s_waitcnt vmcnt(0)", "s_barrier"]
    for h in range(2):
        r += kreads(h, 2 * SLOT) + ["s_waitcnt lgkmcnt(0)"]
        for j in range(2):
            for q in range(5):
                s = V(vS + 4 * q, 4)
                for ks in range(4): r.append(mf(s, Kf(j, ks), Qf(q, ks), "0" if ks == 0 else s))
            r.append("s_nop 7")
            for q in range(5):
                b = vS + 4 * q
                r.append("v_max3_f32 %s, %s, %s, %s" % (V(vP + q), V(vP + q), V(b), V(b + 1)))
                r.append("v_max3_f32 %s, %s, %s, %s" % (V(vP + q), V(vP + q), V(b + 2), V(b + 3)))
    r += ["s_barrier", "s_add_u32 s48, s48, 1", "s_cmp_lt_u32 s48, 16"]
    return r
def maxpass_fin():
    r = []
    for q in range(5): r += cinit_seq(q, vP + q, vP + 5 + q)
    return r + ["s_mov_b32 %s, s49" % sG] + kreads(0)

B = {}
B["setup"] = setup(); B["cold0"] = cold_init() + cold_q(0) + cold_kv(0, 0) + cold_q(1) + setup2() + cold_qaddr() + ["s_mov_b64 vcc, -1"]
for q in range(5): B["qc%d" % q] = qconv(q); B["ch%d" % q] = cold_hook(q); B["ql%d" % q] = qload(q)
B["mest_l"] = mest_last(); B["cold_fin"] = cold_fin(); B["pro"] = pro(); B["loop"] = loop_body()
B["epi_a"] = epi_a(); B["xw0"] = xwrite(0); B["xw1"] = xwrite(1); B["epi_b"] = epi_b()
B["ep_a"] = epilogue_a(); B["keep0"] = epilogue_keep(0); B["keep1"] = epilogue_keep(1); B["ep_b"] = epilogue_b()
B["warm"] = ["s_mov_b32 %s, 1" % sHd, "s_mov_b64 vcc, 0"] + mest_reads() + ["s_waitcnt lgkmcnt(8)"]
B["mx_i"] = maxpass_init(); B["mx_b"] = maxpass_body(); B["mx_f"] = maxpass_fin()
for kk in OPT["kill"].split(","):
    pre = {"dma": None, "m0": "s_add_u32 m0", "bar": "s_barrier", "kread": "ds_read_b128", "vread": "ds_read_b64", "exp": "v_exp", "cvt": "v_cvt", "wait": "s_waitcnt",
           "hook": "s_cbranch_scc1 L_qpre"}
    if kk == "dma": B["loop"] = [t for t in B["loop"] if not t.endswith(" lds")]
    elif kk == "st":
        for n in ("ep_a", "ep_b"): B[n] = [t for t in B[n] if not t.startswith("buffer_store")]
    elif kk in pre: B["loop"] = [t for t in B["loop"] if not t.startswith(pre[kk])]

L = []
e = L.append
def blk(n): L.extend(B[n])
def stamp():
    if OPT["stamp"] >= 2:
        L.extend(["s_memrealtime s[70:71]" if OPT["rt"] else "s_memtime s[70:71]", "s_waitcnt lgkmcnt(0)", "s_sub_u32 s70, s70, %s" % ("s62" if OPT["rt"] else "s60"),
                  "s_mov_b32 m0, s72", "s_add_u32 s72, s72, 1", "v_writelane_b32 v153, s70, m0"])
blk("setup")
if OPT["stamp"] >= 2: e("s_mov_b32 s72, 0"); e("v_mov_b32 v153, 0")
e("L_cold:")
blk("cold0")
e("L_qconv:")
stamp()
for q in range(5):
    e("s_cbranch_vccnz L_ch%d" % q); e("L_ch%d_ret:" % q)
    blk("qc%d" % q)
blk("mest_l")
stamp()
e("s_cbranch_vccnz L_cold_fin")
e("L_pro:")
stamp()
blk("pro")
stamp()
e(".p2align 3")
e("L_loop:")
blk("loop")
if OPT["stamp"] >= 3: stamp(); e("s_and_b32 s40, %s, 15" % sCnt)
e("s_cbranch_scc1 L_loop")
stamp()
blk("epi_a")
e("s_cmp_eq_u32 %s, 0" % sPar); e("s_cbranch_scc0 L_xw1")
blk("xw0")
e("L_xw_ret:")
blk("epi_b")
stamp()
blk("ep_a")
e("s_cmp_eq_u32 %s, 0" % sPar); e("s_cbranch_scc0 L_keep1")
blk("keep0")
e("L_keep_ret:")
blk("ep_b")
e("s_or_b32 s40, %s, %s" % (sHd, sMode)); e("s_cbranch_scc1 L_finish")
blk("warm"); e("s_branch L_qconv")
e("L_finish:")
stamp()
e("s_barrier")
e("s_cmp_eq_u32 %s, 0" % sMode); e("s_cbranch_scc0 L_next_redo")
e("v_mov_b32 v0, %d" % FB)
e("ds_read_b128 v[4:7], v0"); e("ds_read_b128 v[8:11], v0 offset:16"); e("s_waitcnt lgkmcnt(0)")
e("v_or3_b32 v4, v4, v5, v6"); e("v_or3_b32 v8, v8, v9, v10"); e("v_or_b32 v4, v4, v7"); e("v_or_b32 v8, v8, v11"); e("s_nop 0")
e("v_readfirstlane_b32 s40, v4"); e("v_readfirstlane_b32 s41, v8"); e("s_nop 3")
e("s_cmp_lg_u32 s40, 0"); e("s_cselect_b32 %s, 1, 0" % sMask); e("s_cmp_lg_u32 s41, 0"); e("s_cselect_b32 s41, 2, 0"); e("s_or_b32 %s, %s, s41" % (sMask, sMask))
if OPT["kill"]: e("s_mov_b32 %s, 0" % sMask)
e("L_next_redo:")
e("s_cmp_eq_u32 %s, 0" % sMask); e("s_cbranch_scc1 L_done")
e("s_ff1_i32_b32 %s, %s" % (sHd, sMask)); e("s_bitset0_b32 %s, %s" % (sMask, sHd)); e("s_mov_b32 %s, 1" % sMode)
e("s_waitcnt vmcnt(0)"); e("s_barrier")
e("s_branch L_cold")
e("L_done:")
if OPT["stamp"]:
    e("s_waitcnt vmcnt(0)")
    e("s_memtime s[66:67]\ns_memrealtime s[68:69]\ns_waitcnt lgkmcnt(0)")
    e("s_sub_u32 s66, s66, s60\ns_sub_u32 s68, s68, s62")
    e("s_getreg_b32 s58, hwreg(HW_REG_XCC_ID)\ns_and_b32 s58, s58, 15")
    e("v_mov_b32 v8, s66\nv_mov_b32 v9, s68\nv_mov_b32 v10, s62\nv_mov_b32 v11, s58")
    e("s_lshl_b32 s50, s2, 4\nv_mov_b32 v12, s50")
    e("s_mov_b32 s52, s64\ns_mov_b32 s53, s65\ns_mov_b32 s54, 4096\ns_mov_b32 s55, 0x20000")
    e("s_cmp_eq_u32 %s, 0\ns_cbranch_scc0 L_end" % sW)
    e("buffer_store_dwordx4 v[8:11], v12, s[52:55], 0 offen")
    if OPT["stamp"] >= 2:
        e("s_mov_b32 s54, 0x100000\ns_lshl_b32 s50, s2, 8\ns_add_u32 s50, s50, 4096\nv_lshrrev_b32 v12, 2, %s" % V(vDMA))
        e("buffer_store_dword v153, v12, s[52:55], s50 offen")
e("L_end:")
e("s_endpgm")
for q in range(5):
    e("L_ch%d:" % q); blk("ch%d" % q); e("s_branch L_ch%d_ret" % q)
e("L_cold_fin:"); blk("cold_fin")
e("s_cmp_eq_u32 %s, 0" % sMode); e("s_cbranch_scc1 L_pro")
blk("mx_i")
e("L_mx_loop:"); blk("mx_b"); e("s_cbranch_scc1 L_mx_loop")
blk("mx_f"); e("s_branch L_pro")
qs = [int(x) for x in OPT["qmask"].split(",")]
e("L_qpre:")
for q in range(5):
    if q < 4: e("s_cmp_eq_u32 %s, %d" % (sCnt, qs[q])); e("s_cbranch_scc0 L_qpre%d" % (q + 1))
    blk("ql%d" % q); e("s_branch L_qpre_ret")
    if q < 4: e("L_qpre%d:" % (q + 1))
e("L_xw1:"); blk("xw1"); e("s_branch L_xw_ret")
e("L_keep1:"); blk("keep1"); e("s_branch L_keep_ret")

def trace(par, redo):
    br = ["s_cbranch_scc0 X"]
    def loop(n, hook):
        r = []
        for it in range(n):
            body = list(B["loop"])
            if hook and it < 5:
                k = body.index("L_qpre_ret:"); body[k:k] = B["ql%d" % it] + ["s_branch X"]
            r += body + br
        return r
    def qc(cold):
        r = []
        for q in range(5): r += br + (B["ch%d" % q] + br if cold else []) + B["qc%d" % q]
        return r + B["mest_l"] + br
    def head(hook):
        return B["pro"] + loop(8, hook) + B["epi_a"] + br + B["xw%d" % par] + B["epi_b"] + B["ep_a"] + br + B["keep%d" % par] + B["ep_b"] + br
    t = B["setup"] + B["cold0"] + qc(True) + B["cold_fin"] + br + head(True) + B["warm"] + br + qc(False) + head(False)
    if redo:
        t += ["s_barrier", "s_waitcnt vmcnt(0)", "s_barrier"] + B["cold0"] + qc(True) + B["cold_fin"] + br
        t += B["mx_i"] + B["mx_b"] + B["mx_b"] + B["mx_f"] + br + head(True)
    return t
errs = []
for par in (0, 1): errs += hazard.check(trace(par, True), "par%d" % par)
if errs and not OPT["kill"]:
    print("\n".join(errs[:40])); print(len(errs), "hazard errors"); sys.exit(1)

hdr = """; Attention forward, B=16 H=32 Sq=288 Sk=1024 D=128, bf16.  Generated by my own script (gen.py).
; One workgroup (4 waves, one per SIMD) per pair of heads; K/V streamed through an LDS ring by LDS-DMA.
; Kernarg: q(0) k(8) v(16) out(24) debug(32) ws(40)
; @launch grid=(256,1,1) block=(256,1,1) lds=%d
.amdgcn_target "amdgcn-amd-amdhsa--gfx950"
.text
.globl %s
.p2align 8
.type %s,@function
%s:
""" % (LDS_BYTES, NAME, NAME, NAME)
ftr = """.section .rodata,"a"
.p2align 6
.amdhsa_kernel %s
  .amdhsa_next_free_vgpr 512
  .amdhsa_next_free_sgpr 102
  .amdhsa_accum_offset 256
  .amdhsa_group_segment_fixed_size 0
  .amdhsa_kernarg_size 48
  .amdhsa_user_sgpr_count 2
  .amdhsa_user_sgpr_kernarg_segment_ptr 1
  .amdhsa_system_sgpr_workgroup_id_x 1
.end_amdhsa_kernel
""" % NAME
body = "\n".join(("" if l.endswith(":") else "    ") + l for t in L for l in t.split("\n"))
open(out, "w").write(hdr + body + "\n" + ftr)
print("ok: %d lines; block sizes:" % len(L), {k: len(v) for k, v in B.items()})
```

```python
import sys, struct, math
import hazard
OPT = dict(stamp=0, e64=0, ldnt="nt", qnt="nt", stnt="nt", thr=40, sparse=1, kill="", rt=0, qmask="3,5,7,9,11", vw=8, diag="")
out = sys.argv[1]
for a in sys.argv[2:]:
    k, v = a.split("="); OPT[k] = int(v) if v.lstrip("-").isdigit() else v
def fbits(x): return struct.unpack("<I", struct.pack("<f", x))[0]
def flag(s): return "" if s in ("-", "") else " " + s.replace("+", " ")
NAME = "standalone__gqa_softmax__near_ridge_kernel"

UNIT = 1056; SLOT = 16 * UNIT; HALF = 8 * UNIT
KB = 0; VB = 4 * SLOT; XB = 8 * SLOT; XW = 4352; FB = XB + 4 * XW
LDS_BYTES = 163840
assert FB + 32 <= LDS_BYTES
HB = 288 * 256
def V(n, w=1): return "v%d" % n if w == 1 else "v[%d:%d]" % (n, n + w - 1)
def A(n, w=1): return "a%d" % n if w == 1 else "a[%d:%d]" % (n, n + w - 1)
vQ = 0; vS = 80; vP = 104; vC = 116
vKa, vKb, vVa, vVb, vDMA, vQoff, vTw, vX = 136, 137, 138, 139, 140, 141, 142, 143
vOnes = 144; vL0 = 148; vT = 152
vTr = 152
vO = 160
aO = 0; aL = 64; aQ = 80; aK = 160; aV = 192
def Qf(q, ks): return V(vQ + 16 * q + 4 * ks, 4)
def Sf(b, j): return vS + 8 * b + 4 * j
def Pf(b): return vP + 4 * b
def Of(q, dt): return V(vO + 32 * q + 4 * dt, 4) if q < 3 else A(aO + 32 * (q - 3) + 4 * dt, 4)
def Lf(q): return V(vL0, 4) if q == 0 else A(aL + 4 * (q - 1), 4)
def Kf(j, ks): return A(aK + 16 * j + 4 * ks, 4)
def Vf(h, dt): return aV + 32 * h + 4 * dt
sW, sG, sM, sD, sCnt, sPlus, sMinus, sHd, sMode, sMask, sD2, sQ0, sQ4, sQm, sPar, sThr, sHi, sXo = \
    ["s%d" % i for i in range(20, 38)]
sC2 = "s[38:39]"
SQ, SK, SV, SO = "s[4:7]", "s[8:11]", "s[12:15]", "s[16:19]"
E = "_e64" if OPT["e64"] else ""

def mf(d, a, b, c): return "v_mfma_f32_16x16x32_bf16 %s, %s, %s, %s" % (d, a, b, c)
QK_ORDER = [(0, 0), (0, 1), (0, 2), (0, 3), (1, 3), (1, 2), (1, 1), (1, 0)]
def qk_block(q, b):
    r = []
    for i, (j, ks) in enumerate(QK_ORDER):
        s = V(Sf(b, j), 4)
        r.append(mf(s, Kf(j, ks), Qf(q, ks), V(vC + 4 * q, 4) if i % 4 == 0 else s))
    return r
def pv_block(q, h, b, zero):
    r = []
    for dt in range(8):
        r.append(mf(Of(q, dt), A(Vf(h, dt), 4), V(Pf(b), 4), "0" if zero else Of(q, dt)))
    r.append(mf(Lf(q), V(vOnes, 4), V(Pf(b), 4), "0" if zero else Lf(q)))
    return r
def exps(b): return ["v_exp_f32%s %s, %s" % (E, V(Sf(b, 0) + i), V(Sf(b, 0) + i)) for i in range(8)]
def cvts(b): return ["v_cvt_pk_bf16_f32 %s, %s, %s" % (V(Pf(b) + k), V(Sf(b, 0) + 2 * k), V(Sf(b, 0) + 2 * k + 1)) for k in range(4)]
def kreads(h, off=0):
    return ["ds_read_b128 %s, %s offset:%d" % (Kf(j, ks), V(vKa if h == 0 else vKb), off + j * 512 + ks * 64) for (j, ks) in QK_ORDER]
def vreads(h):
    return ["ds_read_b64_tr_b16 %s, %s offset:%d" % (A(Vf(h, dt) + 2 * j, 2), V(vVa if h == 0 else vVb), j * 512 + dt * 32)
            for dt in range(8) for j in range(2)]
def dma(kv, k): return "buffer_load_dwordx4 %s, %s, %s offen offset:%d%s lds" % (V(vDMA), SV if kv else SK, sG, k * 1024, flag(OPT["ldnt"]))
def setm0(kv, k): return "s_add_u32 m0, %s, %d" % (sM, kv * VB + k * 32)
def vadd(r): return "v_add_u32 %s, %s, %s" % (V(r), sD, V(r))

QKU = {0: (1, 0), 1: (1, 1), 2: (1, 2), 3: (1, 3), 4: (0, 0), 5: (0, 1), 6: (0, 2), 7: (0, 3), 8: (0, 4)}
def period(p, zero=False, ds=(), valu=(), salu=(), dmas=(), kburst=None, at=None):
    mfs = qk_block(QKU[p][1], p % 3)
    hp, qp = QKU[(p - 2) % 9]
    mfs += pv_block(qp, hp, (p - 2) % 3, zero)
    ex = exps((p - 1) % 3); cv = cvts((p - 1) % 3)
    at = dict(at or {})
    front = [list(at.get(g, [])) for g in range(17)]
    dsg = [[] for _ in range(17)]; vg = [[] for _ in range(17)]
    for i, x in enumerate(ex): vg[2 * i].append(x)
    for k, x in enumerate(cv): vg[4 * k + 3].append(x)
    cap = {1: 2, 3: 1, 5: 2, 7: 1, 9: 2, 11: 1, 13: 2, 15: 1, 16: 2}
    for g in at: cap.pop(g, None) if len(at[g]) > 1 else None
    if kburst:
        for i, g in enumerate([1, 1, 3, 5, 5, 7, 9, 9]): dsg[g].append(kburst[i]); cap[g] -= 1
    dg = [g for g in (13, 5, 9, 1) if cap.get(g) == 2 and not front[g]]
    dgs = sorted(dg[:len(dmas)])
    assert len(dgs) == len(dmas), (p, "dma gaps")
    for g, (m, d) in zip(dgs, dmas):
        dsg[g].append(d); cap[g] = 0
        assert not front[g - 1], (p, g)
        front[g - 1].append(m)
    free = []
    for g in sorted(cap): free += [g] * cap[g]
    n = len(ds)
    assert n + len(valu) <= len(free), (p, n, len(valu), len(free))
    fv = free[len(free) - len(valu):] if valu else []
    fd = free[:len(free) - len(valu)]
    for i, x in enumerate(ds): dsg[fd[(i * len(fd)) // n]].append(x)
    for g, x in zip(fv, valu): vg[g].append(x)
    sg = [g for g in range(17) if not front[g] and g not in dgs]
    assert len(salu) <= len(sg)
    for g, x in zip(sg, salu): front[g].append(x)
    r = []
    for g in range(17):
        r.append(mfs[g]); r += front[g] + dsg[g] + vg[g]
    return r
def count_wait(lines, marker, last_needed):
    i = lines.index(marker); j = max(k for k in range(i) if lines[k] == last_needed)
    n = sum(1 for t in lines[j + 1:i] if t.startswith("ds_"))
    lines[i] = "s_waitcnt lgkmcnt(%d)" % n
    return lines
D8 = [(setm0(kv, k), dma(kv, k)) for kv in range(2) for k in range(4)]
ADV1 = ["s_add_u32 %s, %s, 1" % (sCnt, sCnt), "s_and_b32 s40, %s, 3" % sCnt, "s_cselect_b32 %s, %s, %s" % (sD, sPlus, sMinus),
        "s_cmp_lg_u32 s40, 2", "s_cselect_b32 %s, %s, %s" % (sD2, sPlus, sMinus)]
ADV2 = ["s_add_u32 %s, %s, %s" % (sM, sM, sD2), "s_add_u32 %s, %s, 16384" % (sG, sG)]
SYNC = ["s_waitcnt vmcnt(%d)" % OPT["vw"], "s_barrier"]
def tail_periods(zero, vb, dm, hook):
    r = period(6, zero=zero, ds=vb[:6], dmas=dm[0:1], at={7: ["WAITVA"]})
    r += period(7, zero=zero, ds=vb[6:12], dmas=dm[1:2], valu=[vadd(vVa), vadd(vKa)])
    r += period(8, zero=zero, kburst=kreads(1), dmas=dm[2:3], at={16: ["WAITK1"]})
    r += period(0, zero=zero, ds=vb[12:16], dmas=dm[3:4], valu=[vadd(vKb)])
    r += period(1, zero=zero, dmas=dm[4:5], valu=[vadd(vVb)])
    at = {7: ["WAITVB"], 13: SYNC}
    sal = list(ADV2)
    if hook:
        at[14] = ["s_and_b32 s40, %s, 15" % sCnt]
    r += period(2, salu=sal, at=at)
    return r
def loop_body():
    va, vb = vreads(0), vreads(1)
    r = period(3, kburst=kreads(0), dmas=D8[0:1], salu=ADV1, at={16: ["WAITK0"]})
    r += period(4, ds=va[:8], dmas=D8[1:2], at={15: ["s_bitcmp1_b32 %s, %s" % (sQm, sCnt)], 16: ["s_cbranch_scc1 L_qpre", "L_qpre_ret:"]})
    r += period(5, ds=va[8:16], dmas=D8[2:3])
    r += tail_periods(False, vb, D8[3:8], True)
    for mk, last in (("WAITK0", kreads(0)[-1]), ("WAITVA", va[-1]), ("WAITK1", kreads(1)[-1]), ("WAITVB", vb[-1])):
        count_wait(r, mk, last)
    return r
def pro():
    va, vb = vreads(0), vreads(1)
    r = ["s_waitcnt lgkmcnt(0)"]
    m = qk_block(0, 4 % 3)
    sal = ADV1 + [D8[0][0]]
    for g in range(8):
        r.append(m[g])
        if g == 7: r.append(D8[0][1])
        else:
            if g >= 1: r.append(sal[g - 1])
            r += va[2 * g:2 * g + 2]
    m = qk_block(1, 5 % 3); ex = exps(4 % 3); cv = cvts(4 % 3)
    r += [D8[1][0], m[0], va[14], va[15], m[1], D8[1][1], m[2], D8[2][0], ex[0], m[3], ex[1], m[4], D8[2][1], m[5], ex[2], m[6], ex[3], m[7]]
    r += ex[4:8] + cv
    r += tail_periods(True, vb, D8[3:8], False)
    for mk, last in (("WAITVA", va[-1]), ("WAITK1", kreads(1)[-1]), ("WAITVB", vb[-1])):
        count_wait(r, mk, last)
    return r
def xwrite(par):
    return ["ds_write_b128 %s, %s offset:%d" % (V(vX), Of(4, (4 if par == 0 else 0) + i), i * 1024) for i in range(4)]
def epi_a():
    return ["s_xor_b32 s41, %s, 1" % sW, "s_mul_i32 s41, s41, %d" % XW, "s_add_u32 s41, s41, %d" % XB,
            "v_add_u32 %s, s41, %s" % (V(vX), V(vDMA)), "v_lshrrev_b32 %s, 2, %s" % (V(vT + 2), V(vDMA)), "v_add_u32 %s, s41, %s" % (V(vT + 3), V(vT + 2)),
            "ds_write_b32 %s, %s offset:4096" % (V(vT + 3), A(aL + 12))]
def epi_b():
    sal = ["s_mul_i32 s42, %s, %d" % (sHd, HB), "s_add_u32 s43, s42, %s" % sQ0, "s_add_u32 s47, s42, %s" % sQ4,
           "s_add_u32 s44, s43, 4096", "s_add_u32 s45, s43, 8192", "s_add_u32 s46, s43, 12288",
           "s_lshl_b32 s40, %s, 7" % sPar, "s_add_u32 s47, s47, s40"]
    r = period(3, salu=sal, valu=["v_add_u32 %s, %s, %s" % (V(vX), sXo, V(vDMA)), "v_add_u32 %s, %s, %s" % (V(vT + 3), sXo, V(vT + 2))])
    m = pv_block(2, 1, 2 % 3, False); ex = exps(3 % 3); cv = cvts(3 % 3)
    for g in range(8): r += [m[g], ex[g]]
    r += [m[8]] + cv + ["s_waitcnt lgkmcnt(0)", "s_barrier"]
    m = pv_block(3, 1, 3 % 3, False)
    f = [["ds_read_b128 %s, %s offset:%d" % (V(vS + 4 * i, 4), V(vX), i * 1024) for i in (0, 1)],
         ["ds_read_b128 %s, %s offset:%d" % (V(vS + 4 * i, 4), V(vX), i * 1024) for i in (2, 3)],
         ["ds_read_b32 %s, %s offset:4096" % (V(vS + 16), V(vT + 3)), "v_accvgpr_read_b32 %s, %s" % (V(vS + 17), A(aL))],
         ["v_rcp_f32 %s, %s" % (V(vT + 4), V(vL0))],
         ["v_rcp_f32 %s, %s" % (V(vT + 6), V(vS + 17))],
         ["v_accvgpr_read_b32 %s, %s" % (V(vS + 18), A(aL + 4)), "v_accvgpr_read_b32 %s, %s" % (V(vS + 20), A(aL + 12))],
         [], [], []]
    for g in range(9): r += [m[g]] + f[g]
    return r
def pkmul(x, r): return "v_pk_mul_f32 %s, %s, %s op_sel_hi:[1,0]" % (V(x, 2), V(x, 2), V(r, 2))
TMP = vQ + 32
def norm_w(src, rl, ndt, pre=None):
    r = []
    for dt in range(ndt):
        x = src + 4 * dt; t = TMP + 2 * dt
        if pre: r += pre(dt)
        r += [pkmul(x, rl), pkmul(x + 2, rl),
              "v_cvt_pk_bf16_f32 %s, %s, %s" % (V(t), V(x), V(x + 1)), "v_cvt_pk_bf16_f32 %s, %s, %s" % (V(t + 1), V(x + 2), V(x + 3))]
        if dt > 0: r.append("ds_write_b64 %s, %s offset:%d" % (V(vTw), V(t - 2, 2), (dt - 1) * 32))
    r.append("ds_write_b64 %s, %s offset:%d" % (V(vTw), V(TMP + 2 * (ndt - 1), 2), (ndt - 1) * 32))
    return r
def tr_reads(buf): return ["ds_read_b128 %s, %s offset:%d" % (V(vQ + 48 + 16 * buf + 4 * i, 4), V(vTr), i * 1088) for i in range(4)]
def tr_stores(buf, soff):
    return ["buffer_store_dwordx4 %s, %s, %s, %s offen offset:%d%s" % (V(vQ + 48 + 16 * buf + 4 * i, 4), V(vDMA), SO, soff, i * 1024, flag(OPT["stnt"])) for i in range(4)]
def weave(main, extra, start, step):
    r = list(main)
    for i, x in reversed(list(enumerate(extra))):
        k = min(len(main), start + i * step)
        r[k:k] = x if isinstance(x, list) else [x]
    return r
def with_stores(main, buf, soff):
    st = tr_stores(buf, soff)
    r = weave(main, [["WAITST", st[0]], st[1], st[2], st[3]], 12, 6)
    return r
def epilogue_a():
    r = norm_w(vO, vT + 4, 8) + tr_reads(0)
    r += ["v_rcp_f32 %s, %s" % (V(vT + 4), V(vS + 18)), "v_accvgpr_read_b32 %s, %s" % (V(vS + 19), A(aL + 8))]
    r += with_stores(norm_w(vO + 32, vT + 6, 8), 0, "s43"); count_wait(r, "WAITST", tr_reads(0)[-1])
    r += tr_reads(1)
    r += ["v_rcp_f32 %s, %s" % (V(vT + 6), V(vS + 19))]
    r += with_stores(norm_w(vO + 64, vT + 4, 8), 1, "s44"); count_wait(r, "WAITST", tr_reads(1)[-1])
    r += tr_reads(0)
    rd = lambda dt: ["v_accvgpr_read_b32 %s, %s" % (V(vQ + 4 * dt + i), A(aO + 4 * dt + i)) for i in range(4)]
    r += with_stores(norm_w(vQ, vT + 6, 8, rd), 0, "s45"); count_wait(r, "WAITST", tr_reads(0)[-1])
    r += tr_reads(1)
    r += ["v_add_f32 %s, %s, %s" % (V(vS + 20), V(vS + 20), V(vS + 16)),
          "v_add_f32 %s, %s, %s" % (V(vS + 17), V(vS + 17), V(vL0)),
          "v_rcp_f32 %s, %s" % (V(vT + 4), V(vS + 20)),
          "v_add_f32 %s, %s, %s" % (V(vS + 18), V(vS + 18), V(vS + 19)),
          "v_add_f32 %s, %s, %s" % (V(vS + 17), V(vS + 17), V(vS + 20)),
          "v_add_f32 %s, %s, %s" % (V(vS + 17), V(vS + 17), V(vS + 18)),
          "v_cmp_ngt_f32 vcc, %s, %s" % (sThr, V(vS + 17)),
          "s_lshl_b32 s40, %s, 2" % sHd, "s_add_u32 s40, s40, %s" % sW, "s_lshl_b32 s40, s40, 2", "s_add_u32 s40, s40, %d" % FB,
          "s_or_b32 s41, vcc_lo, vcc_hi", "v_mov_b32 %s, s40" % V(vS + 21), "v_mov_b32 %s, s41" % V(vS + 22),
          "ds_write_b32 %s, %s" % (V(vS + 21), V(vS + 22))]
    return r
def epilogue_keep(par):
    return ["v_accvgpr_read_b32 %s, %s" % (V(vQ + i), A(aO + 32 + 16 * par + i)) for i in range(16)]
def epilogue_b():
    r = ["v_pk_add_f32 %s, %s, %s" % (V(vQ + i, 2), V(vQ + i, 2), V(vS + i, 2)) for i in range(0, 16, 2)]
    st = tr_stores(1, "s46")
    r += ["s_waitcnt lgkmcnt(1)"] + weave(norm_w(vQ, vT + 4, 4), st, 0, 5)
    r += ["v_lshrrev_b32 %s, 7, %s" % (V(vS), V(vDMA)), "v_and_b32 %s, 0x70, %s" % (V(vS + 1), V(vDMA)),
          "v_lshl_add_u32 %s, %s, 8, %s" % (V(vS + 1), V(vS), V(vS + 1)), "v_lshl_add_u32 %s, %s, 4, %s" % (V(vS + 2), V(vS), V(vS + 1)),
          "v_add_u32 %s, %s, %s" % (V(vS + 2), sXo, V(vS + 2))]
    r += ["ds_read_b128 %s, %s offset:%d" % (V(vS + 4 + 4 * i, 4), V(vS + 2), i * 8 * 272) for i in range(2)]
    r += ["s_waitcnt lgkmcnt(0)"]
    r += ["buffer_store_dwordx4 %s, %s, %s, s47 offen offset:%d%s" % (V(vS + 4 + 4 * i, 4), V(vS + 1), SO, i * 2048, flag(OPT["stnt"])) for i in range(2)]
    return r
def xlane_max(x, t):
    return ["v_mov_b32 %s, %s" % (V(t), V(x)), "s_nop 1", "v_permlane16_swap_b32 %s, %s" % (V(x), V(t)),
            "v_max_f32 %s, %s, %s" % (V(x), V(x), V(t)), "v_mov_b32 %s, %s" % (V(t), V(x)), "s_nop 1",
            "v_permlane32_swap_b32 %s, %s" % (V(x), V(t))]
def cinit_seq(q, x, t):
    return xlane_max(x, t) + ["v_min_f32_e64 %s, -%s, -%s" % (V(vC + 4 * q + i), V(x), V(t)) for i in range(4)]
def mest_red(q):
    b = vP + 4 * (q % 2)
    return ["v_max3_f32 %s, %s, %s, %s" % (V(b), V(b), V(b + 1), V(b + 2)), "v_max_f32 %s, %s, %s" % (V(b), V(b), V(b + 3))] + cinit_seq(q, b, b + 1)
def mest_mfma(q):
    s = V(vP + 4 * (q % 2), 4)
    return [mf(s, A(Vf(1, ks), 4), Qf(q, ks), "0" if ks == 0 else s) for ks in range(4)]
def qconv(q):
    r = []
    for g in range(16 * q, 16 * q + 16, 8):
        T = [vS + 2 * i for i in range(8)]
        for i in range(8): r.append("v_accvgpr_read_b32 %s, %s" % (V(T[i] + 1), A(aQ + g + i)))
        for i in range(8): r.append("v_lshlrev_b32 %s, 16, %s" % (V(T[i]), V(T[i] + 1)))
        for i in range(8): r.append("v_and_b32 %s, %s, %s" % (V(T[i] + 1), sHi, V(T[i] + 1)))
        for i in range(8): r.append("v_pk_mul_f32 %s, %s, %s" % (V(T[i], 2), V(T[i], 2), sC2))
        for i in range(8): r.append("v_cvt_pk_bf16_f32 %s, %s, %s" % (V(vQ + g + i), V(T[i]), V(T[i] + 1)))
    if q > 0:
        mm = mest_mfma(q - 1)
        r = weave(r, mm, 0, 2)
        r = weave(r, [x for x in mest_red(q - 1) if not x.startswith("s_nop")], 24, 3)
    return r
def mest_reads():
    return ["v_min_u32 %s, %s, %s" % (V(vX), V(vKa), V(vKb))] + \
           ["ds_read_b128 %s, %s offset:%d" % (A(Vf(1, ks), 4), V(vX), ks * 64) for ks in range(4)] + kreads(0)
def mest_last():
    return ["s_nop 0"] + mest_mfma(4) + ["s_nop 7"] + mest_red(4) + ["s_nop 0"]
def qload(q):
    r = ["s_add_u32 s41, %s, %d" % ((sQ0, HB + q * 4096) if q < 4 else (sQ4, HB))]
    for ks in range(4):
        r.append("buffer_load_dwordx4 %s, %s, %s, s41 offen offset:%d%s" % (A(aQ + 16 * q + 4 * ks, 4), V(vQoff), SQ, ks * 64, flag(OPT["qnt"])))
    return r
def cold_init():
    return ["s_lshl_b32 %s, %s, 4" % (sCnt, sHd), "s_lshl_b32 %s, %s, 18" % (sG, sHd), "s_lshl_b32 s40, %s, 12" % sW,
            "s_add_u32 %s, %s, s40" % (sG, sG), "s_mul_i32 %s, %s, %d" % (sM, sW, 4 * UNIT),
            "s_mul_i32 s42, %s, %d" % (sHd, HB), "s_add_u32 s50, s42, %s" % sQ0, "s_add_u32 s51, s42, %s" % sQ4,
            "s_mul_i32 s52, %s, %d" % (sPar, SLOT), "s_lshr_b32 s40, %s, 1" % sW, "s_mul_i32 s40, s40, %d" % VB,
            "s_add_u32 s52, s52, s40", "s_add_u32 s52, s52, %d" % (2 * SLOT)]
def cold_q(q):
    r = []
    for k in range(4):
        r += ["s_add_u32 m0, %s, %d" % (("s52", q * 4 * UNIT + k * 32) if q < 4 else (sXo, k * 32)), "s_nop 0",
              "buffer_load_dwordx4 %s, %s, %s offen offset:%d%s lds" % (V(vDMA), SQ, "s50" if q < 4 else "s51", k * 1024, flag(OPT["qnt"]))]
    if q < 3: r.append("s_add_u32 s50, s50, 4096")
    return r
def cold_kv(kv, t):
    r = []
    for k in range(4): r += ["s_add_u32 m0, %s, %d" % (sM, t * SLOT + kv * VB + k * 32), "s_nop 0", dma(kv, k)]
    if kv == 1: r.append("s_add_u32 %s, %s, 16384" % (sG, sG))
    return r
def cold_qaddr():
    return ["v_bfe_u32 v1, %s, 6, 2" % V(vDMA), "v_mul_u32_u24 v1, %d, v1" % UNIT, "v_bfe_u32 v2, %s, 4, 2" % V(vDMA), "v_lshl_add_u32 v1, v2, 8, v1",
            "v_lshrrev_b32 v2, 8, %s" % V(vDMA), "v_lshl_add_u32 v1, v2, 4, v1", "v_add_u32 %s, s52, v1" % V(vT + 2), "v_add_u32 %s, %s, v1" % (V(vT + 3), sXo)]
def cold_rd(q):
    return ["ds_read_b128 %s, %s offset:%d" % (A(aQ + 16 * q + 4 * ks, 4), V(vT + 2 if q < 4 else vT + 3), (q * 4 * UNIT if q < 4 else 0) + ks * 64) for ks in range(4)]
def cold_hook(q):
    nxt = {0: cold_q(2), 1: cold_q(4), 2: cold_kv(1, 0), 3: cold_kv(0, 1), 4: cold_kv(1, 1)}[q]
    r = ["s_waitcnt vmcnt(8)"] + nxt + cold_rd(q)
    if q == 1: r = ["s_waitcnt vmcnt(8)"] + cold_q(3) + ["s_barrier"] + mest_reads() + r
    return r + ["s_waitcnt lgkmcnt(0)"]
def cold_fin():
    return ["s_add_u32 %s, %s, %d" % (sM, sM, 2 * SLOT), "s_waitcnt vmcnt(8)", "s_barrier"]
def setup():
    r = ["s_cmp_ge_u32 s2, 256", "s_cbranch_scc1 L_end"]
    if OPT["stamp"]: r += ["s_memtime s[60:61]", "s_memrealtime s[62:63]"]
    r += ["s_load_dwordx4 s[44:47], s[0:1], 0", "s_load_dwordx4 s[48:51], s[0:1], 16"]
    if OPT["stamp"]: r += ["s_load_dwordx2 s[64:65], s[0:1], 40"]
    r += ["v_lshrrev_b32 v1, 6, v0", "v_and_b32 v0, 63, v0", "v_readfirstlane_b32 %s, v1" % sW]
    r += ["v_lshlrev_b32 %s, 4, v0" % V(vDMA)]
    r += ["s_mul_i32 s40, s2, %d" % (2 * HB), "s_lshl_b32 s41, s2, 19",
          "s_mov_b32 s6, %d" % (2 * HB), "s_mov_b32 s7, 0x20000", "s_mov_b32 s10, 0x80000", "s_mov_b32 s11, 0x20000",
          "s_mov_b32 s14, 0x80000", "s_mov_b32 s15, 0x20000", "s_mov_b32 s18, %d" % (2 * HB), "s_mov_b32 s19, 0x20000",
          "s_lshl_b32 %s, %s, 14" % (sQ0, sW), "s_lshr_b32 %s, %s, 1" % (sQ4, sW), "s_lshl_b32 %s, %s, 12" % (sQ4, sQ4), "s_add_u32 %s, %s, 65536" % (sQ4, sQ4),
          "s_and_b32 %s, %s, 1" % (sPar, sW), "s_mov_b32 %s, 0" % sHd, "s_mov_b32 %s, 0" % sMode,
          "s_mul_i32 %s, %s, %d" % (sXo, sW, XW), "s_add_u32 %s, %s, %d" % (sXo, sXo, XB),
          "s_waitcnt lgkmcnt(0)",
          "s_add_u32 s4, s44, s40", "s_addc_u32 s5, s45, 0", "s_add_u32 s8, s46, s41", "s_addc_u32 s9, s47, 0",
          "s_add_u32 s12, s48, s41", "s_addc_u32 s13, s49, 0", "s_add_u32 s16, s50, s40", "s_addc_u32 s17, s51, 0"]
    return r
def setup2():
    qm = sum(1 << int(x) for x in OPT["qmask"].split(","))
    cb = fbits(math.log2(math.e) / math.sqrt(128.0))
    r = ["v_lshrrev_b32 v0, 4, %s" % V(vDMA)]
    r += ["s_mov_b32 %s, %d" % (sPlus, SLOT), "s_mov_b32 %s, %d" % (sMinus, -3 * SLOT), "s_mov_b32 s38, 0x%08x" % cb, "s_mov_b32 s39, 0x%08x" % cb,
          "s_mov_b32 %s, 0x%08x" % (sThr, fbits(2.0 ** OPT["thr"])), "s_mov_b32 %s, 0xffff0000" % sHi, "s_mov_b32 %s, 0x%x" % (sQm, qm),
          "s_mul_i32 s40, %s, %d" % (sPar, HALF), "s_sub_u32 s41, %d, s40" % HALF]
    r += ["v_and_b32 v1, 7, v0", "v_mul_u32_u24 v1, %d, v1" % UNIT, "v_bfe_u32 v2, v0, 3, 1", "v_lshl_add_u32 v1, v2, 8, v1",
          "v_lshrrev_b32 v2, 4, v0", "v_lshl_add_u32 v1, v2, 4, v1",
          "v_add_u32 %s, s40, v1" % V(vKa), "v_add_u32 %s, s41, v1" % V(vKb)]
    r += ["v_bfe_u32 v1, v0, 2, 3", "v_mul_u32_u24 v1, %d, v1" % UNIT, "v_lshrrev_b32 v2, 5, v0", "v_lshl_add_u32 v1, v2, 8, v1",
          "v_and_b32 v2, 3, v0", "v_lshl_add_u32 v1, v2, 3, v1", "v_add_u32 v1, %d, v1" % VB,
          "v_add_u32 %s, s40, v1" % V(vVa), "v_add_u32 %s, s41, v1" % V(vVb)]
    r += ["v_and_b32 v1, 15, v0", "v_lshrrev_b32 v2, 4, v0", "v_lshlrev_b32 v3, 8, v1", "v_lshl_add_u32 %s, v2, 4, v3" % V(vQoff),
          "v_mul_u32_u24 v3, 272, v1", "v_lshl_add_u32 v3, v2, 3, v3", "v_add_u32 %s, %s, v3" % (V(vTw), sXo),
          "v_mul_u32_u24 v3, 272, v2", "v_lshl_add_u32 v3, v1, 4, v3", "v_add_u32 %s, %s, v3" % (V(vTr), sXo)]
    r += ["v_mov_b32 v2, 0x3f803f80"]
    if OPT["sparse"]:
        r += ["v_and_b32 v1, 3, v0", "v_cmp_eq_u32 vcc, 0, v1", "s_nop 1", "v_cndmask_b32 v2, 0, v2, vcc"]
    r += ["v_mov_b32 %s, v2" % V(vOnes + i) for i in range(4)]
    return r
def maxpass_init():
    return ["v_mov_b32 %s, 0xff800000" % V(vP + q) for q in range(5)] + \
           ["s_mov_b32 s48, 0", "s_mov_b32 s49, %s" % sG, "s_sub_u32 %s, %s, 32768" % (sG, sG), "s_waitcnt lgkmcnt(0)"]
def maxpass_body():
    r = []
    for k in range(4): r += ["s_add_u32 m0, %s, %d" % (sM, k * 32), "s_nop 0", dma(0, k)]
    r += ["s_add_u32 %s, %s, 16384" % (sG, sG), "s_waitcnt vmcnt(0)", "s_barrier"]
    for h in range(2):
        r += kreads(h, 2 * SLOT) + ["s_waitcnt lgkmcnt(0)"]
        for j in range(2):
            for q in range(5):
                s = V(vS + 4 * q, 4)
                for ks in range(4): r.append(mf(s, Kf(j, ks), Qf(q, ks), "0" if ks == 0 else s))
            r.append("s_nop 7")
            for q in range(5):
                b = vS + 4 * q
                r.append("v_max3_f32 %s, %s, %s, %s" % (V(vP + q), V(vP + q), V(b), V(b + 1)))
                r.append("v_max3_f32 %s, %s, %s, %s" % (V(vP + q), V(vP + q), V(b + 2), V(b + 3)))
    r += ["s_barrier", "s_add_u32 s48, s48, 1", "s_cmp_lt_u32 s48, 16"]
    return r
def maxpass_fin():
    r = []
    for q in range(5): r += cinit_seq(q, vP + q, vP + 5 + q)
    return r + ["s_mov_b32 %s, s49" % sG] + kreads(0)

B = {}
B["setup"] = setup(); B["cold0"] = cold_init() + cold_q(0) + cold_kv(0, 0) + cold_q(1) + setup2() + cold_qaddr() + ["s_mov_b64 vcc, -1"]
for q in range(5): B["qc%d" % q] = qconv(q); B["ch%d" % q] = cold_hook(q); B["ql%d" % q] = qload(q)
B["mest_l"] = mest_last(); B["cold_fin"] = cold_fin(); B["pro"] = pro(); B["loop"] = loop_body()
B["epi_a"] = epi_a(); B["xw0"] = xwrite(0); B["xw1"] = xwrite(1); B["epi_b"] = epi_b()
B["ep_a"] = epilogue_a(); B["keep0"] = epilogue_keep(0); B["keep1"] = epilogue_keep(1); B["ep_b"] = epilogue_b()
B["warm"] = ["s_mov_b32 %s, 1" % sHd, "s_mov_b64 vcc, 0"] + mest_reads() + ["s_waitcnt lgkmcnt(8)"]
B["mx_i"] = maxpass_init(); B["mx_b"] = maxpass_body(); B["mx_f"] = maxpass_fin()
for kk in OPT["kill"].split(","):
    pre = {"dma": None, "m0": "s_add_u32 m0", "bar": "s_barrier", "kread": "ds_read_b128", "vread": "ds_read_b64", "exp": "v_exp", "cvt": "v_cvt", "wait": "s_waitcnt",
           "hook": "s_cbranch_scc1 L_qpre"}
    if kk == "dma": B["loop"] = [t for t in B["loop"] if not t.endswith(" lds")]
    elif kk == "st":
        for n in ("ep_a", "ep_b"): B[n] = [t for t in B[n] if not t.startswith("buffer_store")]
    elif kk in pre: B["loop"] = [t for t in B["loop"] if not t.startswith(pre[kk])]

L = []
e = L.append
def blk(n): L.extend(B[n])
def stamp():
    if OPT["stamp"] >= 2:
        L.extend(["s_memrealtime s[70:71]" if OPT["rt"] else "s_memtime s[70:71]", "s_waitcnt lgkmcnt(0)", "s_sub_u32 s70, s70, %s" % ("s62" if OPT["rt"] else "s60"),
                  "s_mov_b32 m0, s72", "s_add_u32 s72, s72, 1", "v_writelane_b32 v153, s70, m0"])
blk("setup")
if OPT["stamp"] >= 2: e("s_mov_b32 s72, 0"); e("v_mov_b32 v153, 0")
e("L_cold:")
blk("cold0")
e("L_qconv:")
stamp()
for q in range(5):
    e("s_cbranch_vccnz L_ch%d" % q); e("L_ch%d_ret:" % q)
    blk("qc%d" % q)
blk("mest_l")
stamp()
e("s_cbranch_vccnz L_cold_fin")
e("L_pro:")
stamp()
blk("pro")
stamp()
e(".p2align 3")
e("L_loop:")
blk("loop")
if OPT["stamp"] >= 3: stamp(); e("s_and_b32 s40, %s, 15" % sCnt)
e("s_cbranch_scc1 L_loop")
stamp()
blk("epi_a")
e("s_cmp_eq_u32 %s, 0" % sPar); e("s_cbranch_scc0 L_xw1")
blk("xw0")
e("L_xw_ret:")
blk("epi_b")
stamp()
blk("ep_a")
e("s_cmp_eq_u32 %s, 0" % sPar); e("s_cbranch_scc0 L_keep1")
blk("keep0")
e("L_keep_ret:")
blk("ep_b")
e("s_or_b32 s40, %s, %s" % (sHd, sMode)); e("s_cbranch_scc1 L_finish")
blk("warm"); e("s_branch L_qconv")
e("L_finish:")
stamp()
e("s_barrier")
e("s_cmp_eq_u32 %s, 0" % sMode); e("s_cbranch_scc0 L_next_redo")
e("v_mov_b32 v0, %d" % FB)
e("ds_read_b128 v[4:7], v0"); e("ds_read_b128 v[8:11], v0 offset:16"); e("s_waitcnt lgkmcnt(0)")
e("v_or3_b32 v4, v4, v5, v6"); e("v_or3_b32 v8, v8, v9, v10"); e("v_or_b32 v4, v4, v7"); e("v_or_b32 v8, v8, v11"); e("s_nop 0")
e("v_readfirstlane_b32 s40, v4"); e("v_readfirstlane_b32 s41, v8"); e("s_nop 3")
e("s_cmp_lg_u32 s40, 0"); e("s_cselect_b32 %s, 1, 0" % sMask); e("s_cmp_lg_u32 s41, 0"); e("s_cselect_b32 s41, 2, 0"); e("s_or_b32 %s, %s, s41" % (sMask, sMask))
if OPT["kill"]: e("s_mov_b32 %s, 0" % sMask)
e("L_next_redo:")
e("s_cmp_eq_u32 %s, 0" % sMask); e("s_cbranch_scc1 L_done")
e("s_ff1_i32_b32 %s, %s" % (sHd, sMask)); e("s_bitset0_b32 %s, %s" % (sMask, sHd)); e("s_mov_b32 %s, 1" % sMode)
e("s_waitcnt vmcnt(0)"); e("s_barrier")
e("s_branch L_cold")
e("L_done:")
if OPT["diag"]:
    e("s_waitcnt vmcnt(0)")
    stamp()
    a, b = OPT["diag"].split(":")
    e("s_nop 4")
    e("v_readlane_b32 s66, v153, %s" % b)
    if a != "s": e("v_readlane_b32 s67, v153, %s" % a)
    else: e("s_mov_b32 s67, 0")
    e("s_nop 4")
    e("s_sub_u32 s66, s66, s67\ns_cmp_eq_u32 s2, 100\ns_cselect_b32 s66, s66, 0\ns_add_u32 s66, s66, 12000")
    e("L_spin:\ns_sleep 1\ns_memrealtime s[68:69]\ns_waitcnt lgkmcnt(0)\ns_sub_u32 s68, s68, s62\ns_cmp_lt_u32 s68, s66\ns_cbranch_scc1 L_spin")
elif OPT["stamp"]:
    e("s_waitcnt vmcnt(0)")
    e("s_memtime s[66:67]\ns_memrealtime s[68:69]\ns_waitcnt lgkmcnt(0)")
    e("s_sub_u32 s66, s66, s60\ns_sub_u32 s68, s68, s62")
    e("s_getreg_b32 s58, hwreg(HW_REG_XCC_ID)\ns_and_b32 s58, s58, 15")
    e("v_mov_b32 v8, s66\nv_mov_b32 v9, s68\nv_mov_b32 v10, s62\nv_mov_b32 v11, s58")
    e("s_lshl_b32 s50, s2, 4\nv_mov_b32 v12, s50")
    e("s_mov_b32 s52, s64\ns_mov_b32 s53, s65\ns_mov_b32 s54, 4096\ns_mov_b32 s55, 0x20000")
    e("s_cmp_eq_u32 %s, 0\ns_cbranch_scc0 L_end" % sW)
    e("buffer_store_dwordx4 v[8:11], v12, s[52:55], 0 offen")
    if OPT["stamp"] >= 2:
        e("s_mov_b32 s54, 0x100000\ns_lshl_b32 s50, s2, 8\ns_add_u32 s50, s50, 4096\nv_lshrrev_b32 v12, 2, %s" % V(vDMA))
        e("buffer_store_dword v153, v12, s[52:55], s50 offen")
e("L_end:")
e("s_endpgm")
for q in range(5):
    e("L_ch%d:" % q); blk("ch%d" % q); e("s_branch L_ch%d_ret" % q)
e("L_cold_fin:"); blk("cold_fin")
e("s_cmp_eq_u32 %s, 0" % sMode); e("s_cbranch_scc1 L_pro")
blk("mx_i")
e("L_mx_loop:"); blk("mx_b"); e("s_cbranch_scc1 L_mx_loop")
blk("mx_f"); e("s_branch L_pro")
qs = [int(x) for x in OPT["qmask"].split(",")]
e("L_qpre:")
for q in range(5):
    if q < 4: e("s_cmp_eq_u32 %s, %d" % (sCnt, qs[q])); e("s_cbranch_scc0 L_qpre%d" % (q + 1))
    blk("ql%d" % q); e("s_branch L_qpre_ret")
    if q < 4: e("L_qpre%d:" % (q + 1))
e("L_xw1:"); blk("xw1"); e("s_branch L_xw_ret")
e("L_keep1:"); blk("keep1"); e("s_branch L_keep_ret")

def trace(par, redo):
    br = ["s_cbranch_scc0 X"]
    def loop(n, hook):
        r = []
        for it in range(n):
            body = list(B["loop"])
            if hook and it < 5:
                k = body.index("L_qpre_ret:"); body[k:k] = B["ql%d" % it] + ["s_branch X"]
            r += body + br
        return r
    def qc(cold):
        r = []
        for q in range(5): r += br + (B["ch%d" % q] + br if cold else []) + B["qc%d" % q]
        return r + B["mest_l"] + br
    def head(hook):
        return B["pro"] + loop(8, hook) + B["epi_a"] + br + B["xw%d" % par] + B["epi_b"] + B["ep_a"] + br + B["keep%d" % par] + B["ep_b"] + br
    t = B["setup"] + B["cold0"] + qc(True) + B["cold_fin"] + br + head(True) + B["warm"] + br + qc(False) + head(False)
    if redo:
        t += ["s_barrier", "s_waitcnt vmcnt(0)", "s_barrier"] + B["cold0"] + qc(True) + B["cold_fin"] + br
        t += B["mx_i"] + B["mx_b"] + B["mx_b"] + B["mx_f"] + br + head(True)
    return t
errs = []
for par in (0, 1): errs += hazard.check(trace(par, True), "par%d" % par)
if errs and not OPT["kill"]:
    print("\n".join(errs[:40])); print(len(errs), "hazard errors"); sys.exit(1)

hdr = """; Attention forward, B=16 H=32 Sq=288 Sk=1024 D=128, bf16.  Generated by my own script (gen.py).
; One workgroup (4 waves, one per SIMD) per pair of heads; K/V streamed through an LDS ring by LDS-DMA.
; Kernarg: q(0) k(8) v(16) out(24) debug(32) ws(40)
; @launch grid=(256,1,1) block=(256,1,1) lds=%d
.amdgcn_target "amdgcn-amd-amdhsa--gfx950"
.text
.globl %s
.p2align 8
.type %s,@function
%s:
""" % (LDS_BYTES, NAME, NAME, NAME)
ftr = """.section .rodata,"a"
.p2align 6
.amdhsa_kernel %s
  .amdhsa_next_free_vgpr 512
  .amdhsa_next_free_sgpr 102
  .amdhsa_accum_offset 256
  .amdhsa_group_segment_fixed_size 0
  .amdhsa_kernarg_size 48
  .amdhsa_user_sgpr_count 2
  .amdhsa_user_sgpr_kernarg_segment_ptr 1
  .amdhsa_system_sgpr_workgroup_id_x 1
.end_amdhsa_kernel
""" % NAME
body = "\n".join(("" if l.endswith(":") else "    ") + l for t in L for l in t.split("\n"))
open(out, "w").write(hdr + body + "\n" + ftr)
print("ok: %d lines; block sizes:" % len(L), {k: len(v) for k, v in B.items()})
```

```python
import sys, struct, math
import hazard
OPT = dict(stamp=0, e64=0, ldnt="nt", qnt="nt", stnt="nt", thr=40, sparse=1, kill="", rt=0, qmask="3,5,7,9,11", vw=8, diag="", pad=0, dly=0, burn=0, unroll=0, pf=0, cw=8)
out = sys.argv[1]
for a in sys.argv[2:]:
    k, v = a.split("="); OPT[k] = int(v) if v.lstrip("-").isdigit() else v
def fbits(x): return struct.unpack("<I", struct.pack("<f", x))[0]
def flag(s): return "" if s in ("-", "") else " " + s.replace("+", " ")
NAME = "standalone__gqa_softmax__near_ridge_kernel"

UNIT = 1056; SLOT = 16 * UNIT; HALF = 8 * UNIT
KB = 0; VB = 4 * SLOT; XB = 8 * SLOT; XW = 4352; FB = XB + 4 * XW
LDS_BYTES = 163840
assert FB + 32 <= LDS_BYTES
HB = 288 * 256
def V(n, w=1): return "v%d" % n if w == 1 else "v[%d:%d]" % (n, n + w - 1)
def A(n, w=1): return "a%d" % n if w == 1 else "a[%d:%d]" % (n, n + w - 1)
vQ = 0; vS = 80; vP = 104; vC = 116
vKa, vKb, vVa, vVb, vDMA, vQoff, vTw, vX = 136, 137, 138, 139, 140, 141, 142, 143
vOnes = 144; vL0 = 148; vT = 152
vTr = 152
vO = 160
aO = 0; aL = 64; aQ = 80; aK = 160; aV = 192
def Qf(q, ks): return V(vQ + 16 * q + 4 * ks, 4)
def Sf(b, j): return vS + 8 * b + 4 * j
def Pf(b): return vP + 4 * b
def Of(q, dt): return V(vO + 32 * q + 4 * dt, 4) if q < 3 else A(aO + 32 * (q - 3) + 4 * dt, 4)
def Lf(q): return V(vL0, 4) if q == 0 else A(aL + 4 * (q - 1), 4)
def Kf(j, ks): return A(aK + 16 * j + 4 * ks, 4)
def Vf(h, dt): return aV + 32 * h + 4 * dt
sW, sG, sM, sD, sCnt, sPlus, sMinus, sHd, sMode, sMask, sD2, sQ0, sQ4, sQm, sPar, sThr, sHi, sXo = \
    ["s%d" % i for i in range(20, 38)]
sC2 = "s[38:39]"
SQ, SK, SV, SO = "s[4:7]", "s[8:11]", "s[12:15]", "s[16:19]"
E = "_e64" if OPT["e64"] else ""

def mf(d, a, b, c): return "v_mfma_f32_16x16x32_bf16 %s, %s, %s, %s" % (d, a, b, c)
QK_ORDER = [(0, 0), (0, 1), (0, 2), (0, 3), (1, 3), (1, 2), (1, 1), (1, 0)]
def qk_block(q, b):
    r = []
    for i, (j, ks) in enumerate(QK_ORDER):
        s = V(Sf(b, j), 4)
        r.append(mf(s, Kf(j, ks), Qf(q, ks), V(vC + 4 * q, 4) if i % 4 == 0 else s))
    return r
def pv_block(q, h, b, zero):
    r = []
    for dt in range(8):
        r.append(mf(Of(q, dt), A(Vf(h, dt), 4), V(Pf(b), 4), "0" if zero else Of(q, dt)))
    r.append(mf(Lf(q), V(vOnes, 4), V(Pf(b), 4), "0" if zero else Lf(q)))
    return r
def exps(b): return ["v_exp_f32%s %s, %s" % (E, V(Sf(b, 0) + i), V(Sf(b, 0) + i)) for i in range(8)]
def cvts(b): return ["v_cvt_pk_bf16_f32 %s, %s, %s" % (V(Pf(b) + k), V(Sf(b, 0) + 2 * k), V(Sf(b, 0) + 2 * k + 1)) for k in range(4)]
def kreads(h, off=0):
    return ["ds_read_b128 %s, %s offset:%d" % (Kf(j, ks), V(vKa if h == 0 else vKb), off + j * 512 + ks * 64) for (j, ks) in QK_ORDER]
def vreads(h):
    return ["ds_read_b64_tr_b16 %s, %s offset:%d" % (A(Vf(h, dt) + 2 * j, 2), V(vVa if h == 0 else vVb), j * 512 + dt * 32)
            for dt in range(8) for j in range(2)]
def dma(kv, k): return "buffer_load_dwordx4 %s, %s, %s offen offset:%d%s lds" % (V(vDMA), SV if kv else SK, sG, k * 1024, flag(OPT["ldnt"]))
def setm0(kv, k): return "s_add_u32 m0, %s, %d" % (sM, kv * VB + k * 32)
def vadd(r): return "v_add_u32 %s, %s, %s" % (V(r), sD, V(r))

QKU = {0: (1, 0), 1: (1, 1), 2: (1, 2), 3: (1, 3), 4: (0, 0), 5: (0, 1), 6: (0, 2), 7: (0, 3), 8: (0, 4)}
def period(p, zero=False, ds=(), valu=(), salu=(), dmas=(), kburst=None, at=None):
    mfs = qk_block(QKU[p][1], p % 3)
    hp, qp = QKU[(p - 2) % 9]
    mfs += pv_block(qp, hp, (p - 2) % 3, zero)
    ex = exps((p - 1) % 3); cv = cvts((p - 1) % 3)
    at = dict(at or {})
    front = [list(at.get(g, [])) for g in range(17)]
    dsg = [[] for _ in range(17)]; vg = [[] for _ in range(17)]
    for i, x in enumerate(ex): vg[2 * i].append(x)
    for k, x in enumerate(cv): vg[4 * k + 3].append(x)
    cap = {1: 2, 3: 1, 5: 2, 7: 1, 9: 2, 11: 1, 13: 2, 15: 1, 16: 2}
    for g in at: cap.pop(g, None) if len(at[g]) > 1 else None
    if kburst:
        for i, g in enumerate([1, 1, 3, 5, 5, 7, 9, 9]): dsg[g].append(kburst[i]); cap[g] -= 1
    dg = [g for g in (13, 5, 9, 1) if cap.get(g) == 2 and not front[g]]
    dgs = sorted(dg[:len(dmas)])
    assert len(dgs) == len(dmas), (p, "dma gaps")
    for g, (m, d) in zip(dgs, dmas):
        dsg[g].append(d); cap[g] = 0
        assert not front[g - 1], (p, g)
        front[g - 1].append(m)
    free = []
    for g in sorted(cap): free += [g] * cap[g]
    n = len(ds)
    assert n + len(valu) <= len(free), (p, n, len(valu), len(free))
    fv = free[len(free) - len(valu):] if valu else []
    fd = free[:len(free) - len(valu)]
    for i, x in enumerate(ds): dsg[fd[(i * len(fd)) // n]].append(x)
    for g, x in zip(fv, valu): vg[g].append(x)
    sg = [g for g in range(17) if not front[g] and g not in dgs]
    assert len(salu) <= len(sg)
    for g, x in zip(sg, salu): front[g].append(x)
    r = []
    for g in range(17):
        r.append(mfs[g]); r += front[g] + dsg[g] + vg[g]
    return r
def count_wait(lines, marker, last_needed):
    i = lines.index(marker); j = max(k for k in range(i) if lines[k] == last_needed)
    n = sum(1 for t in lines[j + 1:i] if t.startswith("ds_"))
    lines[i] = "s_waitcnt lgkmcnt(%d)" % n
    return lines
D8 = [(setm0(kv, k), dma(kv, k)) for kv in range(2) for k in range(4)]
ADV1 = ["s_add_u32 %s, %s, 1" % (sCnt, sCnt), "s_and_b32 s40, %s, 3" % sCnt, "s_cselect_b32 %s, %s, %s" % (sD, sPlus, sMinus),
        "s_cmp_lg_u32 s40, 2", "s_cselect_b32 %s, %s, %s" % (sD2, sPlus, sMinus)]
ADV2 = ["s_add_u32 %s, %s, %s" % (sM, sM, sD2), "s_add_u32 %s, %s, 16384" % (sG, sG)]
SYNC = ["s_waitcnt vmcnt(%d)" % OPT["vw"], "s_barrier"]
def tail_periods(zero, vb, dm, hook):
    r = period(6, zero=zero, ds=vb[:6], dmas=dm[0:1], at={7: ["WAITVA"]})
    r += period(7, zero=zero, ds=vb[6:12], dmas=dm[1:2], valu=[vadd(vVa), vadd(vKa)])
    r += period(8, zero=zero, kburst=kreads(1), dmas=dm[2:3], at={16: ["WAITK1"]})
    r += period(0, zero=zero, ds=vb[12:16], dmas=dm[3:4], valu=[vadd(vKb)])
    r += period(1, zero=zero, dmas=dm[4:5], valu=[vadd(vVb)])
    at = {7: ["WAITVB"], 13: SYNC}
    sal = list(ADV2)
    if hook:
        at[14] = ["s_and_b32 s40, %s, 15" % sCnt]
    r += period(2, salu=sal, at=at)
    return r
def loop_body():
    va, vb = vreads(0), vreads(1)
    r = period(3, kburst=kreads(0), dmas=D8[0:1], salu=ADV1, at={16: ["WAITK0"]})
    r += period(4, ds=va[:8], dmas=D8[1:2], at={15: ["s_bitcmp1_b32 %s, %s" % (sQm, sCnt)], 16: ["s_cbranch_scc1 L_qpre", "L_qpre_ret:"]})
    r += period(5, ds=va[8:16], dmas=D8[2:3])
    r += tail_periods(False, vb, D8[3:8], True)
    for mk, last in (("WAITK0", kreads(0)[-1]), ("WAITVA", va[-1]), ("WAITK1", kreads(1)[-1]), ("WAITVB", vb[-1])):
        count_wait(r, mk, last)
    return r
def pro():
    va, vb = vreads(0), vreads(1)
    r = ["s_waitcnt lgkmcnt(0)"]
    m = qk_block(0, 4 % 3)
    sal = ADV1 + [D8[0][0]]
    for g in range(8):
        r.append(m[g])
        if g == 7: r.append(D8[0][1])
        else:
            if g >= 1: r.append(sal[g - 1])
            r += va[2 * g:2 * g + 2]
    m = qk_block(1, 5 % 3); ex = exps(4 % 3); cv = cvts(4 % 3)
    r += [D8[1][0], m[0], va[14], va[15], m[1], D8[1][1], m[2], D8[2][0], ex[0], m[3], ex[1], m[4], D8[2][1], m[5], ex[2], m[6], ex[3], m[7]]
    r += ex[4:8] + cv
    r += tail_periods(True, vb, D8[3:8], False)
    for mk, last in (("WAITVA", va[-1]), ("WAITK1", kreads(1)[-1]), ("WAITVB", vb[-1])):
        count_wait(r, mk, last)
    return r
def xwrite(par):
    return ["ds_write_b128 %s, %s offset:%d" % (V(vX), Of(4, (4 if par == 0 else 0) + i), i * 1024) for i in range(4)]
def epi_a():
    return ["s_xor_b32 s41, %s, 1" % sW, "s_mul_i32 s41, s41, %d" % XW, "s_add_u32 s41, s41, %d" % XB,
            "v_add_u32 %s, s41, %s" % (V(vX), V(vDMA)), "v_lshrrev_b32 %s, 2, %s" % (V(vT + 2), V(vDMA)), "v_add_u32 %s, s41, %s" % (V(vT + 3), V(vT + 2)),
            "ds_write_b32 %s, %s offset:4096" % (V(vT + 3), A(aL + 12))]
def epi_b():
    sal = ["s_mul_i32 s42, %s, %d" % (sHd, HB), "s_add_u32 s43, s42, %s" % sQ0, "s_add_u32 s47, s42, %s" % sQ4,
           "s_add_u32 s44, s43, 4096", "s_add_u32 s45, s43, 8192", "s_add_u32 s46, s43, 12288",
           "s_lshl_b32 s40, %s, 7" % sPar, "s_add_u32 s47, s47, s40"]
    r = period(3, salu=sal, valu=["v_add_u32 %s, %s, %s" % (V(vX), sXo, V(vDMA)), "v_add_u32 %s, %s, %s" % (V(vT + 3), sXo, V(vT + 2))])
    m = pv_block(2, 1, 2 % 3, False); ex = exps(3 % 3); cv = cvts(3 % 3)
    for g in range(8): r += [m[g], ex[g]]
    r += [m[8]] + cv + ["s_waitcnt lgkmcnt(0)", "s_barrier"]
    m = pv_block(3, 1, 3 % 3, False)
    f = [["ds_read_b128 %s, %s offset:%d" % (V(vS + 4 * i, 4), V(vX), i * 1024) for i in (0, 1)],
         ["ds_read_b128 %s, %s offset:%d" % (V(vS + 4 * i, 4), V(vX), i * 1024) for i in (2, 3)],
         ["ds_read_b32 %s, %s offset:4096" % (V(vS + 16), V(vT + 3)), "v_accvgpr_read_b32 %s, %s" % (V(vS + 17), A(aL))],
         ["v_rcp_f32 %s, %s" % (V(vT + 4), V(vL0))],
         ["v_rcp_f32 %s, %s" % (V(vT + 6), V(vS + 17))],
         ["v_accvgpr_read_b32 %s, %s" % (V(vS + 18), A(aL + 4)), "v_accvgpr_read_b32 %s, %s" % (V(vS + 20), A(aL + 12))],
         [], [], []]
    for g in range(9): r += [m[g]] + f[g]
    return r
def pkmul(x, r): return "v_pk_mul_f32 %s, %s, %s op_sel_hi:[1,0]" % (V(x, 2), V(x, 2), V(r, 2))
TMP = vQ + 32
def norm_w(src, rl, ndt, pre=None):
    r = []
    for dt in range(ndt):
        x = src + 4 * dt; t = TMP + 2 * dt
        if pre: r += pre(dt)
        r += [pkmul(x, rl), pkmul(x + 2, rl),
              "v_cvt_pk_bf16_f32 %s, %s, %s" % (V(t), V(x), V(x + 1)), "v_cvt_pk_bf16_f32 %s, %s, %s" % (V(t + 1), V(x + 2), V(x + 3))]
        if dt > 0: r.append("ds_write_b64 %s, %s offset:%d" % (V(vTw), V(t - 2, 2), (dt - 1) * 32))
    r.append("ds_write_b64 %s, %s offset:%d" % (V(vTw), V(TMP + 2 * (ndt - 1), 2), (ndt - 1) * 32))
    return r
def tr_reads(buf): return ["ds_read_b128 %s, %s offset:%d" % (V(vQ + 48 + 16 * buf + 4 * i, 4), V(vTr), i * 1088) for i in range(4)]
def tr_stores(buf, soff):
    return ["buffer_store_dwordx4 %s, %s, %s, %s offen offset:%d%s" % (V(vQ + 48 + 16 * buf + 4 * i, 4), V(vDMA), SO, soff, i * 1024, flag(OPT["stnt"])) for i in range(4)]
def weave(main, extra, start, step):
    r = list(main)
    for i, x in reversed(list(enumerate(extra))):
        k = min(len(main), start + i * step)
        r[k:k] = x if isinstance(x, list) else [x]
    return r
def with_stores(main, buf, soff):
    st = tr_stores(buf, soff)
    r = weave(main, [["WAITST", st[0]], st[1], st[2], st[3]], 12, 6)
    return r
def epilogue_a():
    r = norm_w(vO, vT + 4, 8) + tr_reads(0)
    r += ["v_rcp_f32 %s, %s" % (V(vT + 4), V(vS + 18)), "v_accvgpr_read_b32 %s, %s" % (V(vS + 19), A(aL + 8))]
    r += with_stores(norm_w(vO + 32, vT + 6, 8), 0, "s43"); count_wait(r, "WAITST", tr_reads(0)[-1])
    r += tr_reads(1)
    r += ["v_rcp_f32 %s, %s" % (V(vT + 6), V(vS + 19))]
    r += with_stores(norm_w(vO + 64, vT + 4, 8), 1, "s44"); count_wait(r, "WAITST", tr_reads(1)[-1])
    r += tr_reads(0)
    rd = lambda dt: ["v_accvgpr_read_b32 %s, %s" % (V(vQ + 4 * dt + i), A(aO + 4 * dt + i)) for i in range(4)]
    r += with_stores(norm_w(vQ, vT + 6, 8, rd), 0, "s45"); count_wait(r, "WAITST", tr_reads(0)[-1])
    r += tr_reads(1)
    r += ["v_add_f32 %s, %s, %s" % (V(vS + 20), V(vS + 20), V(vS + 16)),
          "v_add_f32 %s, %s, %s" % (V(vS + 17), V(vS + 17), V(vL0)),
          "v_rcp_f32 %s, %s" % (V(vT + 4), V(vS + 20)),
          "v_add_f32 %s, %s, %s" % (V(vS + 18), V(vS + 18), V(vS + 19)),
          "v_add_f32 %s, %s, %s" % (V(vS + 17), V(vS + 17), V(vS + 20)),
          "v_add_f32 %s, %s, %s" % (V(vS + 17), V(vS + 17), V(vS + 18)),
          "v_cmp_ngt_f32 vcc, %s, %s" % (sThr, V(vS + 17)),
          "s_lshl_b32 s40, %s, 2" % sHd, "s_add_u32 s40, s40, %s" % sW, "s_lshl_b32 s40, s40, 2", "s_add_u32 s40, s40, %d" % FB,
          "s_or_b32 s41, vcc_lo, vcc_hi", "v_mov_b32 %s, s40" % V(vS + 21), "v_mov_b32 %s, s41" % V(vS + 22),
          "ds_write_b32 %s, %s" % (V(vS + 21), V(vS + 22))]
    return r
def epilogue_keep(par):
    return ["v_accvgpr_read_b32 %s, %s" % (V(vQ + i), A(aO + 32 + 16 * par + i)) for i in range(16)]
def epilogue_b():
    r = ["v_pk_add_f32 %s, %s, %s" % (V(vQ + i, 2), V(vQ + i, 2), V(vS + i, 2)) for i in range(0, 16, 2)]
    st = tr_stores(1, "s46")
    r += ["s_waitcnt lgkmcnt(1)"] + weave(norm_w(vQ, vT + 4, 4), st, 0, 5)
    r += ["v_lshrrev_b32 %s, 7, %s" % (V(vS), V(vDMA)), "v_and_b32 %s, 0x70, %s" % (V(vS + 1), V(vDMA)),
          "v_lshl_add_u32 %s, %s, 8, %s" % (V(vS + 1), V(vS), V(vS + 1)), "v_lshl_add_u32 %s, %s, 4, %s" % (V(vS + 2), V(vS), V(vS + 1)),
          "v_add_u32 %s, %s, %s" % (V(vS + 2), sXo, V(vS + 2))]
    r += ["ds_read_b128 %s, %s offset:%d" % (V(vS + 4 + 4 * i, 4), V(vS + 2), i * 8 * 272) for i in range(2)]
    r += ["s_waitcnt lgkmcnt(0)"]
    r += ["buffer_store_dwordx4 %s, %s, %s, s47 offen offset:%d%s" % (V(vS + 4 + 4 * i, 4), V(vS + 1), SO, i * 2048, flag(OPT["stnt"])) for i in range(2)]
    return r
def xlane_max(x, t):
    return ["v_mov_b32 %s, %s" % (V(t), V(x)), "s_nop 1", "v_permlane16_swap_b32 %s, %s" % (V(x), V(t)),
            "v_max_f32 %s, %s, %s" % (V(x), V(x), V(t)), "v_mov_b32 %s, %s" % (V(t), V(x)), "s_nop 1",
            "v_permlane32_swap_b32 %s, %s" % (V(x), V(t))]
def cinit_seq(q, x, t):
    return xlane_max(x, t) + ["v_min_f32_e64 %s, -%s, -%s" % (V(vC + 4 * q + i), V(x), V(t)) for i in range(4)]
def mest_red(q):
    b = vP + 4 * (q % 2)
    return ["v_max3_f32 %s, %s, %s, %s" % (V(b), V(b), V(b + 1), V(b + 2)), "v_max_f32 %s, %s, %s" % (V(b), V(b), V(b + 3))] + cinit_seq(q, b, b + 1)
def mest_mfma(q):
    s = V(vP + 4 * (q % 2), 4)
    return [mf(s, A(Vf(1, ks), 4), Qf(q, ks), "0" if ks == 0 else s) for ks in range(4)]
def qconv(q):
    r = []
    for g in range(16 * q, 16 * q + 16, 8):
        T = [vS + 2 * i for i in range(8)]
        for i in range(8): r.append("v_accvgpr_read_b32 %s, %s" % (V(T[i] + 1), A(aQ + g + i)))
        for i in range(8): r.append("v_lshlrev_b32 %s, 16, %s" % (V(T[i]), V(T[i] + 1)))
        for i in range(8): r.append("v_and_b32 %s, %s, %s" % (V(T[i] + 1), sHi, V(T[i] + 1)))
        for i in range(8): r.append("v_pk_mul_f32 %s, %s, %s" % (V(T[i], 2), V(T[i], 2), sC2))
        for i in range(8): r.append("v_cvt_pk_bf16_f32 %s, %s, %s" % (V(vQ + g + i), V(T[i]), V(T[i] + 1)))
    if q > 0:
        mm = mest_mfma(q - 1)
        r = weave(r, mm, 0, 2)
        r = weave(r, [x for x in mest_red(q - 1) if not x.startswith("s_nop")], 24, 3)
    return r
def mest_reads():
    return ["v_min_u32 %s, %s, %s" % (V(vX), V(vKa), V(vKb))] + \
           ["ds_read_b128 %s, %s offset:%d" % (A(Vf(1, ks), 4), V(vX), ks * 64) for ks in range(4)] + kreads(0)
def mest_last():
    return ["s_nop 0"] + mest_mfma(4) + ["s_nop 7"] + mest_red(4) + ["s_nop 0"]
def qload(q):
    r = ["s_add_u32 s41, %s, %d" % ((sQ0, HB + q * 4096) if q < 4 else (sQ4, HB))]
    for ks in range(4):
        r.append("buffer_load_dwordx4 %s, %s, %s, s41 offen offset:%d%s" % (A(aQ + 16 * q + 4 * ks, 4), V(vQoff), SQ, ks * 64, flag(OPT["qnt"])))
    return r
def cold_init():
    return ["s_lshl_b32 %s, %s, 4" % (sCnt, sHd), "s_lshl_b32 %s, %s, 18" % (sG, sHd), "s_lshl_b32 s40, %s, 12" % sW,
            "s_add_u32 %s, %s, s40" % (sG, sG), "s_mul_i32 %s, %s, %d" % (sM, sW, 4 * UNIT),
            "s_mul_i32 s42, %s, %d" % (sHd, HB), "s_add_u32 s50, s42, %s" % sQ0, "s_add_u32 s51, s42, %s" % sQ4,
            "s_mul_i32 s52, %s, %d" % (sPar, SLOT), "s_lshr_b32 s40, %s, 1" % sW, "s_mul_i32 s40, s40, %d" % VB,
            "s_add_u32 s52, s52, s40", "s_add_u32 s52, s52, %d" % (2 * SLOT)]
def cold_q(q):
    r = []
    for k in range(4):
        r += ["s_add_u32 m0, %s, %d" % (("s52", q * 4 * UNIT + k * 32) if q < 4 else (sXo, k * 32)), "s_nop 0",
              "buffer_load_dwordx4 %s, %s, %s offen offset:%d%s lds" % (V(vDMA), SQ, "s50" if q < 4 else "s51", k * 1024, flag(OPT["qnt"]))]
    if q < 3: r.append("s_add_u32 s50, s50, 4096")
    return r
def cold_kv(kv, t):
    r = []
    for k in range(4): r += ["s_add_u32 m0, %s, %d" % (sM, t * SLOT + kv * VB + k * 32), "s_nop 0", dma(kv, k)]
    if kv == 1: r.append("s_add_u32 %s, %s, 16384" % (sG, sG))
    return r
def cold_qaddr():
    return ["v_bfe_u32 v1, %s, 6, 2" % V(vDMA), "v_mul_u32_u24 v1, %d, v1" % UNIT, "v_bfe_u32 v2, %s, 4, 2" % V(vDMA), "v_lshl_add_u32 v1, v2, 8, v1",
            "v_lshrrev_b32 v2, 8, %s" % V(vDMA), "v_lshl_add_u32 v1, v2, 4, v1", "v_add_u32 %s, s52, v1" % V(vT + 2), "v_add_u32 %s, %s, v1" % (V(vT + 3), sXo)]
def cold_rd(q):
    return ["ds_read_b128 %s, %s offset:%d" % (A(aQ + 16 * q + 4 * ks, 4), V(vT + 2 if q < 4 else vT + 3), (q * 4 * UNIT if q < 4 else 0) + ks * 64) for ks in range(4)]
def cold_hook(q):
    nxt = {0: cold_q(2), 1: cold_q(4), 2: cold_kv(1, 0), 3: cold_kv(0, 1), 4: cold_kv(1, 1)}[q]
    r = ["s_waitcnt vmcnt(8)"] + nxt + cold_rd(q)
    if q == 1: r = ["s_waitcnt vmcnt(8)"] + cold_q(3) + ["s_barrier"] + mest_reads() + r
    return r + ["s_waitcnt lgkmcnt(0)"]
def cold_fin():
    return ["s_add_u32 %s, %s, %d" % (sM, sM, 2 * SLOT), "s_waitcnt vmcnt(%d)" % OPT["cw"], "s_barrier"]
def setup():
    r = ["s_cmp_ge_u32 s2, 256", "s_cbranch_scc1 L_end"]
    if OPT["stamp"]: r += ["s_memtime s[60:61]", "s_memrealtime s[62:63]"]
    r += ["s_load_dwordx4 s[44:47], s[0:1], 0", "s_load_dwordx4 s[48:51], s[0:1], 16"]
    if OPT["stamp"]: r += ["s_load_dwordx2 s[64:65], s[0:1], 40"]
    r += ["v_lshrrev_b32 v1, 6, v0", "v_and_b32 v0, 63, v0", "v_readfirstlane_b32 %s, v1" % sW]
    r += ["v_lshlrev_b32 %s, 4, v0" % V(vDMA)]
    r += ["s_mul_i32 s40, s2, %d" % (2 * HB), "s_lshl_b32 s41, s2, 19",
          "s_mov_b32 s6, %d" % (2 * HB), "s_mov_b32 s7, 0x20000", "s_mov_b32 s10, 0x80000", "s_mov_b32 s11, 0x20000",
          "s_mov_b32 s14, 0x80000", "s_mov_b32 s15, 0x20000", "s_mov_b32 s18, %d" % (2 * HB), "s_mov_b32 s19, 0x20000",
          "s_lshl_b32 %s, %s, 14" % (sQ0, sW), "s_lshr_b32 %s, %s, 1" % (sQ4, sW), "s_lshl_b32 %s, %s, 12" % (sQ4, sQ4), "s_add_u32 %s, %s, 65536" % (sQ4, sQ4),
          "s_and_b32 %s, %s, 1" % (sPar, sW), "s_mov_b32 %s, 0" % sHd, "s_mov_b32 %s, 0" % sMode,
          "s_mul_i32 %s, %s, %d" % (sXo, sW, XW), "s_add_u32 %s, %s, %d" % (sXo, sXo, XB),
          "s_waitcnt lgkmcnt(0)",
          "s_add_u32 s4, s44, s40", "s_addc_u32 s5, s45, 0", "s_add_u32 s8, s46, s41", "s_addc_u32 s9, s47, 0",
          "s_add_u32 s12, s48, s41", "s_addc_u32 s13, s49, 0", "s_add_u32 s16, s50, s40", "s_addc_u32 s17, s51, 0"]
    return r
def setup2():
    qm = sum(1 << int(x) for x in OPT["qmask"].split(","))
    cb = fbits(math.log2(math.e) / math.sqrt(128.0))
    r = ["v_lshrrev_b32 v0, 4, %s" % V(vDMA)]
    r += ["s_mov_b32 %s, %d" % (sPlus, SLOT), "s_mov_b32 %s, %d" % (sMinus, -3 * SLOT), "s_mov_b32 s38, 0x%08x" % cb, "s_mov_b32 s39, 0x%08x" % cb,
          "s_mov_b32 %s, 0x%08x" % (sThr, fbits(2.0 ** OPT["thr"])), "s_mov_b32 %s, 0xffff0000" % sHi, "s_mov_b32 %s, 0x%x" % (sQm, qm),
          "s_mul_i32 s40, %s, %d" % (sPar, HALF), "s_sub_u32 s41, %d, s40" % HALF]
    r += ["v_and_b32 v1, 7, v0", "v_mul_u32_u24 v1, %d, v1" % UNIT, "v_bfe_u32 v2, v0, 3, 1", "v_lshl_add_u32 v1, v2, 8, v1",
          "v_lshrrev_b32 v2, 4, v0", "v_lshl_add_u32 v1, v2, 4, v1",
          "v_add_u32 %s, s40, v1" % V(vKa), "v_add_u32 %s, s41, v1" % V(vKb)]
    r += ["v_bfe_u32 v1, v0, 2, 3", "v_mul_u32_u24 v1, %d, v1" % UNIT, "v_lshrrev_b32 v2, 5, v0", "v_lshl_add_u32 v1, v2, 8, v1",
          "v_and_b32 v2, 3, v0", "v_lshl_add_u32 v1, v2, 3, v1", "v_add_u32 v1, %d, v1" % VB,
          "v_add_u32 %s, s40, v1" % V(vVa), "v_add_u32 %s, s41, v1" % V(vVb)]
    r += ["v_and_b32 v1, 15, v0", "v_lshrrev_b32 v2, 4, v0", "v_lshlrev_b32 v3, 8, v1", "v_lshl_add_u32 %s, v2, 4, v3" % V(vQoff),
          "v_mul_u32_u24 v3, 272, v1", "v_lshl_add_u32 v3, v2, 3, v3", "v_add_u32 %s, %s, v3" % (V(vTw), sXo),
          "v_mul_u32_u24 v3, 272, v2", "v_lshl_add_u32 v3, v1, 4, v3", "v_add_u32 %s, %s, v3" % (V(vTr), sXo)]
    r += ["v_mov_b32 v2, 0x3f803f80"]
    if OPT["sparse"]:
        r += ["v_and_b32 v1, 3, v0", "v_cmp_eq_u32 vcc, 0, v1", "s_nop 1", "v_cndmask_b32 v2, 0, v2, vcc"]
    r += ["v_mov_b32 %s, v2" % V(vOnes + i) for i in range(4)]
    return r
def maxpass_init():
    return ["v_mov_b32 %s, 0xff800000" % V(vP + q) for q in range(5)] + \
           ["s_mov_b32 s48, 0", "s_mov_b32 s49, %s" % sG, "s_sub_u32 %s, %s, 32768" % (sG, sG), "s_waitcnt lgkmcnt(0)"]
def maxpass_body():
    r = []
    for k in range(4): r += ["s_add_u32 m0, %s, %d" % (sM, k * 32), "s_nop 0", dma(0, k)]
    r += ["s_add_u32 %s, %s, 16384" % (sG, sG), "s_waitcnt vmcnt(0)", "s_barrier"]
    for h in range(2):
        r += kreads(h, 2 * SLOT) + ["s_waitcnt lgkmcnt(0)"]
        for j in range(2):
            for q in range(5):
                s = V(vS + 4 * q, 4)
                for ks in range(4): r.append(mf(s, Kf(j, ks), Qf(q, ks), "0" if ks == 0 else s))
            r.append("s_nop 7")
            for q in range(5):
                b = vS + 4 * q
                r.append("v_max3_f32 %s, %s, %s, %s" % (V(vP + q), V(vP + q), V(b), V(b + 1)))
                r.append("v_max3_f32 %s, %s, %s, %s" % (V(vP + q), V(vP + q), V(b + 2), V(b + 3)))
    r += ["s_barrier", "s_add_u32 s48, s48, 1", "s_cmp_lt_u32 s48, 16"]
    return r
def maxpass_fin():
    r = []
    for q in range(5): r += cinit_seq(q, vP + q, vP + 5 + q)
    return r + ["s_mov_b32 %s, s49" % sG] + kreads(0)

B = {}
B["setup"] = setup(); B["cold0"] = cold_init() + cold_q(0) + cold_kv(0, 0) + cold_q(1) + setup2() + cold_qaddr() + ["s_mov_b64 vcc, -1"]
for q in range(5): B["qc%d" % q] = qconv(q); B["ch%d" % q] = cold_hook(q); B["ql%d" % q] = qload(q)
B["mest_l"] = mest_last(); B["cold_fin"] = cold_fin(); B["pro"] = pro(); B["loop"] = loop_body()
B["epi_a"] = epi_a(); B["xw0"] = xwrite(0); B["xw1"] = xwrite(1); B["epi_b"] = epi_b()
B["ep_a"] = epilogue_a(); B["keep0"] = epilogue_keep(0); B["keep1"] = epilogue_keep(1); B["ep_b"] = epilogue_b()
B["warm"] = ["s_mov_b32 %s, 1" % sHd, "s_mov_b64 vcc, 0"] + mest_reads() + ["s_waitcnt lgkmcnt(8)"]
B["mx_i"] = maxpass_init(); B["mx_b"] = maxpass_body(); B["mx_f"] = maxpass_fin()
if OPT["dly"]:
    B["cold_fin"] = B["cold_fin"] + ["s_waitcnt vmcnt(0)"] + ["s_sleep 16"] * OPT["dly"]
if OPT["burn"]:
    for q in range(1, 5):
        n = OPT["burn"] * q
        B["ch%d" % q] = [mf(V(vO + 4 * (i % 24), 4), Qf(0, i % 4), Qf(0, (i // 4) % 4), V(vO + 4 * (i % 24), 4)) for i in range(n)] + B["ch%d" % q]
    B["cold_fin"] = [mf(V(vO + 4 * (i % 24), 4), Qf(0, i % 4), Qf(1, (i // 4) % 4), V(vO + 4 * (i % 24), 4)) for i in range(OPT["burn"] * 3)] + B["cold_fin"]
if OPT["pad"]:
    nl = []; c = 0
    for t in B["loop"]:
        nl.append(t)
        if t.startswith("v_exp"):
            c += 1
            if c % 8 == 0: nl.append("s_nop %d" % (OPT["pad"] - 1))
    B["loop"] = nl
for kk in OPT["kill"].split(","):
    pre = {"dma": None, "m0": "s_add_u32 m0", "bar": "s_barrier", "kread": "ds_read_b128", "vread": "ds_read_b64", "exp": "v_exp", "cvt": "v_cvt", "wait": "s_waitcnt",
           "hook": "s_cbranch_scc1 L_qpre"}
    if kk == "dma": B["loop"] = [t for t in B["loop"] if not t.endswith(" lds")]
    elif kk == "mfma":
        B["loop"] = [("s_nop 3" if t.startswith("v_mfma") else t) for t in B["loop"]]
    elif kk == "mfmahalf":
        c = [0]
        def f(t):
            if t.startswith("v_mfma"):
                c[0] += 1
                if c[0] % 2: return "s_nop 3"
            return t
        B["loop"] = [f(t) for t in B["loop"]]
    elif kk == "st":
        for n in ("ep_a", "ep_b"): B[n] = [t for t in B[n] if not t.startswith("buffer_store")]
    elif kk in pre: B["loop"] = [t for t in B["loop"] if not t.startswith(pre[kk])]

L = []
e = L.append
def blk(n): L.extend(B[n])
def stamp():
    if OPT["stamp"] >= 2:
        L.extend(["s_memrealtime s[70:71]" if OPT["rt"] else "s_memtime s[70:71]", "s_waitcnt lgkmcnt(0)", "s_sub_u32 s70, s70, %s" % ("s62" if OPT["rt"] else "s60"),
                  "s_mov_b32 m0, s72", "s_add_u32 s72, s72, 1", "v_writelane_b32 v153, s70, m0"])
blk("setup")
if OPT["stamp"] >= 2: e("s_mov_b32 s72, 0"); e("v_mov_b32 v153, 0")
if OPT["pf"]:
    e("s_getpc_b64 s[56:57]")
    e("s_and_b32 s56, s56, 0xffffff00")
    e("s_mov_b32 s58, %d" % (OPT["pf"] * 1024)); e("s_mov_b32 s59, 0x20000")
    e("s_lshr_b32 s40, s2, 3"); e("s_lshl_b32 s40, s40, 2"); e("s_add_u32 s40, s40, %s" % sW); e("s_lshl_b32 s40, s40, 10")
    e("buffer_load_dwordx4 %s, %s, s[56:59], s40 offen" % (V(vS, 4), V(vDMA)))
e("L_cold:")
blk("cold0")
e("L_qconv:")
stamp()
for q in range(5):
    e("s_cbranch_vccnz L_ch%d" % q); e("L_ch%d_ret:" % q)
    blk("qc%d" % q)
blk("mest_l")
stamp()
e("s_cbranch_vccnz L_cold_fin")
e("L_pro:")
stamp()
blk("pro")
stamp()
e(".p2align 3")
if OPT["unroll"]:
    qs_ = [int(x) for x in OPT["qmask"].split(",")]
    if OPT["unroll"] == 2: e("s_cmp_eq_u32 %s, 0" % sHd); e("s_cbranch_scc0 L_loopB")
    for it in range(2, 17):
        for t in B["loop"]:
            if t.startswith("s_cbranch_scc1 L_qpre"):
                if it in qs_:
                    if OPT["unroll"] == 1: e("s_cbranch_scc0 L_sk%d" % it)
                    blk("ql%d" % qs_.index(it))
                    e("L_sk%d:" % it)
            elif t != "L_qpre_ret:": e(t)
        if OPT["stamp"] >= 3: stamp()
    if OPT["unroll"] == 2:
        e("s_branch L_loop_end")
        e("L_loopB:")
        for it in range(2, 17):
            for t in B["loop"]:
                if not t.startswith("s_cbranch_scc1 L_qpre") and t != "L_qpre_ret:": e(t)
            if OPT["stamp"] >= 3: stamp()
        e("L_loop_end:")
    e("L_qpre_ret:")
else:
    e("L_loop:")
    blk("loop")
    if OPT["stamp"] >= 3: stamp(); e("s_and_b32 s40, %s, 15" % sCnt)
    e("s_cbranch_scc1 L_loop")
stamp()
blk("epi_a")
e("s_cmp_eq_u32 %s, 0" % sPar); e("s_cbranch_scc0 L_xw1")
blk("xw0")
e("L_xw_ret:")
blk("epi_b")
stamp()
blk("ep_a")
e("s_cmp_eq_u32 %s, 0" % sPar); e("s_cbranch_scc0 L_keep1")
blk("keep0")
e("L_keep_ret:")
blk("ep_b")
e("s_or_b32 s40, %s, %s" % (sHd, sMode)); e("s_cbranch_scc1 L_finish")
blk("warm"); e("s_branch L_qconv")
e("L_finish:")
stamp()
e("s_barrier")
e("s_cmp_eq_u32 %s, 0" % sMode); e("s_cbranch_scc0 L_next_redo")
e("v_mov_b32 v0, %d" % FB)
e("ds_read_b128 v[4:7], v0"); e("ds_read_b128 v[8:11], v0 offset:16"); e("s_waitcnt lgkmcnt(0)")
e("v_or3_b32 v4, v4, v5, v6"); e("v_or3_b32 v8, v8, v9, v10"); e("v_or_b32 v4, v4, v7"); e("v_or_b32 v8, v8, v11"); e("s_nop 0")
e("v_readfirstlane_b32 s40, v4"); e("v_readfirstlane_b32 s41, v8"); e("s_nop 3")
e("s_cmp_lg_u32 s40, 0"); e("s_cselect_b32 %s, 1, 0" % sMask); e("s_cmp_lg_u32 s41, 0"); e("s_cselect_b32 s41, 2, 0"); e("s_or_b32 %s, %s, s41" % (sMask, sMask))
if OPT["kill"]: e("s_mov_b32 %s, 0" % sMask)
e("L_next_redo:")
e("s_cmp_eq_u32 %s, 0" % sMask); e("s_cbranch_scc1 L_done")
e("s_ff1_i32_b32 %s, %s" % (sHd, sMask)); e("s_bitset0_b32 %s, %s" % (sMask, sHd)); e("s_mov_b32 %s, 1" % sMode)
e("s_waitcnt vmcnt(0)"); e("s_barrier")
e("s_branch L_cold")
e("L_done:")
if OPT["diag"]:
    e("s_waitcnt vmcnt(0)")
    stamp()
    a, b = OPT["diag"].split(":")
    e("s_nop 4")
    e("v_readlane_b32 s66, v153, %s" % b)
    if a != "s": e("v_readlane_b32 s67, v153, %s" % a)
    else: e("s_mov_b32 s67, 0")
    e("s_nop 4")
    e("s_sub_u32 s66, s66, s67\ns_cmp_eq_u32 s2, 100\ns_cselect_b32 s66, s66, 0\ns_add_u32 s66, s66, 12000")
    e("L_spin:\ns_sleep 1\ns_memrealtime s[68:69]\ns_waitcnt lgkmcnt(0)\ns_sub_u32 s68, s68, s62\ns_cmp_lt_u32 s68, s66\ns_cbranch_scc1 L_spin")
elif OPT["stamp"]:
    e("s_waitcnt vmcnt(0)")
    e("s_memtime s[66:67]\ns_memrealtime s[68:69]\ns_waitcnt lgkmcnt(0)")
    e("s_sub_u32 s66, s66, s60\ns_sub_u32 s68, s68, s62")
    e("s_getreg_b32 s58, hwreg(HW_REG_XCC_ID)\ns_and_b32 s58, s58, 15")
    e("v_mov_b32 v8, s66\nv_mov_b32 v9, s68\nv_mov_b32 v10, s62\nv_mov_b32 v11, s58")
    e("s_lshl_b32 s50, s2, 4\nv_mov_b32 v12, s50")
    e("s_mov_b32 s52, s64\ns_mov_b32 s53, s65\ns_mov_b32 s54, 4096\ns_mov_b32 s55, 0x20000")
    e("s_cmp_eq_u32 %s, 0\ns_cbranch_scc0 L_end" % sW)
    e("buffer_store_dwordx4 v[8:11], v12, s[52:55], 0 offen")
    if OPT["stamp"] >= 2:
        e("s_mov_b32 s54, 0x100000\ns_lshl_b32 s50, s2, 8\ns_add_u32 s50, s50, 4096\nv_lshrrev_b32 v12, 2, %s" % V(vDMA))
        e("buffer_store_dword v153, v12, s[52:55], s50 offen")
e("L_end:")
e("s_endpgm")
for q in range(5):
    e("L_ch%d:" % q); blk("ch%d" % q); e("s_branch L_ch%d_ret" % q)
e("L_cold_fin:"); blk("cold_fin")
e("s_cmp_eq_u32 %s, 0" % sMode); e("s_cbranch_scc1 L_pro")
blk("mx_i")
e("L_mx_loop:"); blk("mx_b"); e("s_cbranch_scc1 L_mx_loop")
blk("mx_f"); e("s_branch L_pro")
qs = [int(x) for x in OPT["qmask"].split(",")]
e("L_qpre:")
for q in range(5):
    if q < 4: e("s_cmp_eq_u32 %s, %d" % (sCnt, qs[q])); e("s_cbranch_scc0 L_qpre%d" % (q + 1))
    blk("ql%d" % q); e("s_branch L_qpre_ret")
    if q < 4: e("L_qpre%d:" % (q + 1))
e("L_xw1:"); blk("xw1"); e("s_branch L_xw_ret")
e("L_keep1:"); blk("keep1"); e("s_branch L_keep_ret")

def trace(par, redo):
    br = ["s_cbranch_scc0 X"]
    def loop(n, hook):
        r = []
        for it in range(n):
            body = list(B["loop"])
            if hook and it < 5:
                k = body.index("L_qpre_ret:"); body[k:k] = B["ql%d" % it] + ["s_branch X"]
            r += body + br
        return r
    def qc(cold):
        r = []
        for q in range(5): r += br + (B["ch%d" % q] + br if cold else []) + B["qc%d" % q]
        return r + B["mest_l"] + br
    def head(hook):
        return B["pro"] + loop(8, hook) + B["epi_a"] + br + B["xw%d" % par] + B["epi_b"] + B["ep_a"] + br + B["keep%d" % par] + B["ep_b"] + br
    t = B["setup"] + B["cold0"] + qc(True) + B["cold_fin"] + br + head(True) + B["warm"] + br + qc(False) + head(False)
    if redo:
        t += ["s_barrier", "s_waitcnt vmcnt(0)", "s_barrier"] + B["cold0"] + qc(True) + B["cold_fin"] + br
        t += B["mx_i"] + B["mx_b"] + B["mx_b"] + B["mx_f"] + br + head(True)
    return t
errs = []
for par in (0, 1): errs += hazard.check(trace(par, True), "par%d" % par)
if errs and not OPT["kill"]:
    print("\n".join(errs[:40])); print(len(errs), "hazard errors"); sys.exit(1)

hdr = """; Attention forward, B=16 H=32 Sq=288 Sk=1024 D=128, bf16.  Generated by my own script (gen.py).
; One workgroup (4 waves, one per SIMD) per pair of heads; K/V streamed through an LDS ring by LDS-DMA.
; Kernarg: q(0) k(8) v(16) out(24) debug(32) ws(40)
; @launch grid=(256,1,1) block=(256,1,1) lds=%d
.amdgcn_target "amdgcn-amd-amdhsa--gfx950"
.text
.globl %s
.p2align 8
.type %s,@function
%s:
""" % (LDS_BYTES, NAME, NAME, NAME)
ftr = """.section .rodata,"a"
.p2align 6
.amdhsa_kernel %s
  .amdhsa_next_free_vgpr 512
  .amdhsa_next_free_sgpr 102
  .amdhsa_accum_offset 256
  .amdhsa_group_segment_fixed_size 0
  .amdhsa_kernarg_size 48
  .amdhsa_user_sgpr_count 2
  .amdhsa_user_sgpr_kernarg_segment_ptr 1
  .amdhsa_system_sgpr_workgroup_id_x 1
.end_amdhsa_kernel
""" % NAME
body = "\n".join(("" if l.endswith(":") else "    ") + l for t in L for l in t.split("\n"))
open(out, "w").write(hdr + body + "\n" + ftr)
print("ok: %d lines; block sizes:" % len(L), {k: len(v) for k, v in B.items()})
```
